```python
import torch

def _softmax(x, axis=-1):
    return torch.softmax(x, dim=axis)
def _gelu(x):
    return torch.nn.functional.gelu(x, approximate="tanh")
def _silu(x):
    return torch.nn.functional.silu(x)
def _sigmoid(x):
    return torch.sigmoid(x)
def _layernorm(x, axis=-1, eps=1e-5):
    m = x.mean(dim=axis, keepdim=True)
    v = x.var(dim=axis, keepdim=True, unbiased=False)
    return (x - m) / torch.sqrt(v + eps)
def _scatter_add(tgt, idx, src, axis=0):
    return tgt.clone().index_add_(axis, idx, src)
def _segment_sum(src, seg, n):
    out = torch.zeros((n,) + src.shape[1:], dtype=src.dtype)
    return out.index_add_(0, seg, src)
def _pad(x, pw):
    flat = tuple(v for pair in reversed(pw) for v in pair)
    return torch.nn.functional.pad(x, flat)

kernel_name = 'interleave_layers__sliding_block_cached__moe_arch_mod__decode'

def setup_inputs():

    _w = (lambda a: (lambda t: t.to(torch.bfloat16) if t.is_floating_point() else t)(torch.as_tensor(a)))
    def _A_setup():
        B, Sq, D = 4, 1, 640
        Hq, Hkv, Sk, Dh = 32, 32, 4096, 192
        assert Hq % Hkv == 0, (Hq, Hkv)
        return {
            "x": _w((lambda *s: torch.randn(*s, dtype=torch.bfloat16) * 0.05)(B, Sq, D)),
            "k_cache": _w((lambda *s: torch.randn(*s, dtype=torch.bfloat16) * 1.6)(B, Hkv, Sk, Dh)),
            "v_cache": _w((lambda *s: torch.randn(*s, dtype=torch.bfloat16) * 1.6)(B, Hkv, Sk, Dh)),
            "wq": _w((lambda *s: torch.randn(*s, dtype=torch.bfloat16) * 1.6)(D, Hq * Dh) * (D ** -0.5)),
            "wo": _w((lambda *s: torch.randn(*s, dtype=torch.bfloat16) * 1.6)(Hq * Dh, D) * ((Hq * Dh) ** -0.5)),
        }
    _A_in = _A_setup()

    def _B_setup():
        B, S, D, F, C = 4, 1, 640, 1536, 1
        return {
            "x": _w((lambda *s: torch.randn(*s, dtype=torch.bfloat16) * 0.05)(B, S, D)),
            "w_r": _w((lambda *s: torch.randn(*s, dtype=torch.bfloat16) * 0.05)(D)),
            "w_gate": _w((lambda *s: torch.randn(*s, dtype=torch.bfloat16) * 0.05)(D, F)),
            "w_up": _w((lambda *s: torch.randn(*s, dtype=torch.bfloat16) * 0.05)(D, F)),
            "w_down": _w((lambda *s: torch.randn(*s, dtype=torch.bfloat16) * 0.05)(F, D)),
        }
    _B_in = _B_setup()

    return {
        "A_x": _A_in["x"],
        "A_k_cache": _A_in["k_cache"],
        "A_v_cache": _A_in["v_cache"],
        "A_wq": _A_in["wq"],
        "A_wo": _A_in["wo"],
        "B_x": _B_in["x"],
        "B_w_r": _B_in["w_r"],
        "B_w_gate": _B_in["w_gate"],
        "B_w_up": _B_in["w_up"],
        "B_w_down": _B_in["w_down"],
    }

def reference(A_x, A_k_cache, A_v_cache, A_wq, A_wo, B_x, B_w_r, B_w_gate, B_w_up, B_w_down):
    def _A_ref(x, k_cache, v_cache, wq, wo):
        B, Sq, D = x.shape
        Hq, Dh = 32, 192
        Hkv, Sk = k_cache.shape[1], k_cache.shape[2]
        W = min(4096, max(256, Sk // 4))
        rep = Hq // Hkv
        q = (lambda x, *d: x.permute(*d))((x @ wq).reshape(B, Sq, Hq, Dh), 0, 2, 1, 3)
        k = (lambda x, n, axis: torch.repeat_interleave(x, n, dim=axis))(k_cache[:, :, Sk - W:, :], rep, axis=1)
        v = (lambda x, n, axis: torch.repeat_interleave(x, n, dim=axis))(v_cache[:, :, Sk - W:, :], rep, axis=1)
        scores = torch.einsum("bhqd,bhkd->bhqk", q, k) * (Dh ** -0.5)
        p = _softmax(scores, axis=-1)
        o = torch.einsum("bhqk,bhkd->bhqd", p, v)
        return (lambda x, *d: x.permute(*d))(o, 0, 2, 1, 3).reshape(B, Sq, Hq * Dh) @ wo

    def _B_ref(x, w_r, w_gate, w_up, w_down):
        B, S, D = x.shape
        C = 1
        r = x @ w_r
        idx = torch.argsort(-r, axis=-1)[:, :C]
        idx_e = (lambda x, n, axis: torch.repeat_interleave(x, n, dim=axis))(idx.reshape(B, C, 1), D, axis=2)
        x_sel = (lambda x, i, axis: torch.take_along_dim(x, i, dim=axis))(x, idx_e, axis=1)
        g = _silu(x_sel @ w_gate)
        u = x_sel @ w_up
        y = (g * u) @ w_down
        r_sel = _sigmoid((lambda x, i, axis: torch.take_along_dim(x, i, dim=axis))(r, idx, axis=1))
        y = y * r_sel.reshape(B, C, 1)
        b_off = (torch.arange(B) * S).reshape(B, 1)
        flat_idx = (idx + b_off).reshape(B * C)
        zero = (x * 0.0).reshape(B * S, D)
        upd = _scatter_add(zero, flat_idx, y.reshape(B * C, D), axis=0)
        return x + upd.reshape(B, S, D)

    x = A_x
    x = x + _A_ref(_layernorm(x, axis=-1), A_k_cache, A_v_cache, A_wq, A_wo)
    x = x + _B_ref(_layernorm(x, axis=-1), B_w_r, B_w_gate, B_w_up, B_w_down)
    x = x + _A_ref(_layernorm(x, axis=-1), A_k_cache, A_v_cache, A_wq, A_wo)
    x = x + _B_ref(_layernorm(x, axis=-1), B_w_r, B_w_gate, B_w_up, B_w_down)
    return x
```

```python
import re

def regs_of(tok):
    tok = tok.strip()
    neg = tok.lstrip('-')
    neg = re.sub(r'^abs\((.*)\)$', r'\1', neg); neg = neg.strip('|')
    m = re.fullmatch(r'([vas])\[(\d+):(\d+)\]', neg)
    if m: return {f"{m.group(1)}{i}" for i in range(int(m.group(2)), int(m.group(3)) + 1)}
    m = re.fullmatch(r'([vas])(\d+)', neg)
    if m: return {neg}
    if neg == 'vcc': return {'vcc'}
    if neg == 'exec': return {'exec'}
    if neg == 'm0': return {'m0'}
    return set()

TRANS = ('v_exp_', 'v_log_', 'v_rcp_', 'v_rsq_', 'v_sqrt_', 'v_sin_', 'v_cos_')

class Ins:
    def __init__(self, text):
        self.text = text
        t = text.split(';')[0].strip()
        self.label = t.endswith(':')
        self.directive = t.startswith('.')
        self.op = ''; self.dst = set(); self.src = set(); self.ops = []
        if self.label or self.directive or not t:
            self.empty = True; return
        self.empty = False
        parts = t.split(None, 1)
        self.op = op = parts[0]
        rest = parts[1] if len(parts) > 1 else ''
        toks = [x.strip() for x in re.split(r',(?![^\[]*\])', rest)] if rest else []
        if toks:
            last = toks[-1].split()
            self.mods = ' '.join(last[1:]); toks[-1] = last[0]
        else: self.mods = ''
        self.ops = toks
        R = [regs_of(x) for x in toks]
        U = lambda l: set().union(*l) if l else set()
        self.mfma = op.startswith('v_mfma') or op.startswith('v_smfmac')
        self.valu = op.startswith('v_') and not self.mfma
        self.trans = op.startswith(TRANS)
        self.dot = op.startswith('v_dot')
        self.dpp = '_dpp' in op
        self.perml = op.startswith('v_permlane')
        self.vmem = op.startswith(('buffer_', 'global_'))
        self.ds = op.startswith('ds_')
        self.salu = op.startswith('s_')
        self.ldsdma = self.vmem and re.search(r'\blds\b', self.mods) is not None
        self.wide_store = False; self.srcc = set()
        if self.mfma:
            self.dst = R[0]; self.src = U(R[1:])
            if op.startswith('v_smfmac'): self.srcc = R[0]; self.src |= R[0]; self.ab = U(R[1:])
            else: self.srcc = R[3]; self.ab = R[1] | R[2]
        elif self.perml:
            self.dst = R[0] | R[1]; self.src = R[0] | R[1]
        elif self.valu:
            self.dst = R[0]; self.src = U(R[1:])
            if op.startswith(('v_fmac', 'v_dot2c')) or self.dpp: self.src |= R[0]
            if op.startswith(('v_add_co', 'v_sub_co', 'v_addc_co')): self.dst |= R[1]
        elif self.ds:
            if op.startswith('ds_read'): self.dst = R[0]; self.src = U(R[1:])
            else: self.src = U(R)
        elif self.vmem:
            if 'load' in op and not self.ldsdma: self.dst = R[0]; self.src = U(R[1:])
            elif 'atomic' in op and 'sc0' in self.mods: self.dst = R[0]; self.src = U(R[1:])
            else: self.src = U(R)
            if 'store' in op and op.endswith(('x3', 'x4')):
                self.wide_store = True
                self.sdata = R[0] if op.startswith('buffer') else R[1]
        elif self.salu:
            if op.startswith(('s_cmp', 's_cbranch', 's_branch', 's_waitcnt', 's_nop', 's_barrier', 's_sleep', 's_setprio', 's_endpgm', 's_bitcmp')):
                self.src = U(R)
            else:
                self.dst = R[0] if R else set(); self.src = U(R[1:])
                if 'saveexec' in op: self.dst = self.dst | {'exec'}
    def states(self):
        if self.op == 's_nop': return int(self.ops[0], 0) + 1
        return 1

def need(P, C):
    n = 0
    isv = lambda s: {r for r in s if r[0] in 'va' and r != 'vcc'}
    iss = lambda s: {r for r in s if (r[0] == 's') or r == 'vcc'}
    if P.valu:
        w = isv(P.dst)
        if w:
            if C.valu and C.dpp and (w & C.src): n = max(n, 2)
            if C.perml and (w & C.src): n = max(n, 2)
            if C.mfma and (w & C.src): n = max(n, 2)
            if P.trans and (C.valu or C.mfma or C.ds or C.vmem) and (w & C.src): n = max(n, 1)
            if C.op.startswith(('v_readfirstlane', 'v_readlane')) and (w & C.src): n = max(n, 1)
            if P.dot and not (C.op == P.op and not (w & (regs_of(C.ops[1]) | regs_of(C.ops[2])))) and (w & (C.src | C.dst)): n = max(n, 3)
        ws = iss(P.dst)
        if ws:
            if C.valu and (ws & C.src): n = max(n, 2)
            if C.valu and 'vcc' in ws and C.op.startswith('v_cndmask') : n = max(n, 2)
            if C.vmem and (ws & C.src): n = max(n, 5)
    if P.mfma:
        if C.mfma:
            if P.dst & C.ab: n = max(n, 8)
            if (P.dst & C.srcc) and P.dst != C.srcc: n = max(n, 6)
            if (P.dst & C.dst) and P.dst != C.srcc: n = max(n, 6)
        elif (C.valu or C.ds or C.vmem) and (P.dst & (C.src | C.dst)): n = max(n, 8)
        if C.valu and (P.srcc & C.dst): n = max(n, 3)
    if P.salu and 'm0' in P.dst and C.ldsdma: n = max(n, 1)
    if P.wide_store and (P.sdata & C.dst): n = max(n, 2)
    return n

class Asm:
    def __init__(self): self.lines = []
    def __call__(self, text):
        for l in text.split('\n'):
            l = l.strip()
            if l: self.lines.append(l)
    def finish(self, verbose=False):
        out = []; nins = 0
        for l in self.lines:
            C = Ins(l)
            if not C.empty:
                dist = 0; req = 0
                for P in reversed(out):
                    if P.empty: continue
                    if P.op in ('s_branch', 's_endpgm'): break
                    k = need(P, C)
                    if k - dist > req: req = k - dist
                    dist += P.states()
                    if dist >= 10: break
                if req > 0:
                    out.append(Ins(f"s_nop {req-1}")); nins += 1
            out.append(C)
        lab = {i.text.split(';')[0].strip()[:-1]: k for k, i in enumerate(out) if i.label}
        for k, B in enumerate(out):
            if not B.empty and B.op.startswith(('s_cbranch', 's_branch')):
                tgt = lab.get(B.ops[0])
                if tgt is None: raise SystemExit("unknown label " + B.ops[0])
                before = []
                for i in reversed(out[:k]):
                    if i.empty: continue
                    if i.op in ('s_branch', 's_endpgm'): break
                    before.append(i)
                    if len(before) >= 10: break
                after = [i for i in out[tgt:tgt+40] if not i.empty][:10]
                da = 0
                for C in after:
                    d = da + 1
                    for P in before:
                        if need(P, C) > d: print(f"HAZARD over branch {B.text}: {P.text} -> {C.text} need {need(P,C)} have {d}")
                        d += P.states()
                    da += C.states()
                    if C.op in ('s_branch', 's_endpgm'): break
        if verbose: print(f"; inserted {nins} nops")
        return "\n".join(("" if (i.label or i.directive) else "    ") + i.text for i in out)
```

```python
import sys, math, struct
sys.path.insert(0, "bench"); sys.path.insert(0, "gen")
from asmlib import Asm
from common import wrap, build, KNAME

def f2u(x): return struct.unpack("<I", struct.pack("<f", x))[0]

LOC_Q, LOC_O5, LOC_LSE, LOC_X1, LOC_ST1, LOC_H, LOC_X2, LOC_ST2 = 0, 6144, 18432, 18560, 23680, 24960, 26496, 31616
LSTR, XBLK = 33280, 66560
GBASE, G_L, G3 = 8 * 66560, 163840, 81920
AREA = 1 << 20
STAMPS = 2 << 20
L_ML, L_QB, L_CNT, L_CS = 0, 64, 512, 576
L_PQ = 1280
L_PO = L_PQ + 4096
L_PA = L_PO + 4096
PA_STR = 1664
L_WQ = L_PA + 8 * PA_STR
L_W2 = L_WQ + 40960
LDS_BYTES = L_W2 + 61440
HUGE = 0x80000000
sW, sX, sR, sHH, sJ, sL, sMODE, sBUD, sC = 3, 4, 5, 6, 7, 8, 9, 10, 11
WS, SA, SK, SV, SX = "s[12:15]", "s[16:19]", "s[20:23]", "s[24:27]", "s[28:31]"
pAX, pK, pV, pWQ, pWO, pWR, pG, pU, pD, pOUT, pDBG, pWS = 32, 34, 36, 38, 40, 44, 46, 48, 50, 52, 54, 56
sLOC, sG1, sT, sKQ, sB, sSC, sHUGE = 58, 59, 60, 61, 72, 73, 74
vACT, vTR, vXP, vWR, vMU, vRS, vSG = 1, 2, 3, 4, 5, 6, 7
vCSG, vCSU = vXP, vWR
vCQ0, vCQ1 = 62, 63

M_C4 = 0x000F000F000F000F

class Gen:
    def __init__(self, stamps=False, force_slow=False):
        self.A = Asm(); self.far = []; self.n = 0
        self.stamps = stamps; self.nst = 0; self.stnames = []; self.force_slow = force_slow
    def lab(self, p): self.n += 1; return f"L_{p}{self.n}"
    def stamp(self, name):
        if not self.stamps: return
        if name not in self.stnames: self.stnames.append(name)
        k = self.stnames.index(name)
        assert k < 13
        self.A(f"s_memrealtime s[{76+2*k}:{77+2*k}]")
    def srd(self, S, ptr, size, off=None):
        A = self.A; b = int(S[2:S.index(':')])
        if off is None: A(f"s_mov_b32 s{b}, s{ptr}\ns_mov_b32 s{b+1}, s{ptr+1}")
        else: A(f"s_add_u32 s{b}, s{ptr}, s{off}\ns_addc_u32 s{b+1}, s{ptr+1}, 0")
        A(f"s_mov_b32 s{b+2}, {size}\ns_mov_b32 s{b+3}, 0x20000")
    def exec(self, mask):
        if mask == -1: self.A("s_mov_b64 exec, -1")
        elif mask < 65: self.A(f"s_mov_b64 exec, {mask}")
        else: self.A(f"s_mov_b32 exec_lo, {hex(mask & 0xffffffff)}\ns_mov_b32 exec_hi, {hex(mask >> 32)}")
    def poll_begin(self, sleep=0):
        r, p, ok, g = self.lab("retry"), self.lab("poll"), self.lab("ok"), self.lab("give")
        self.A(f"{r}:\ns_sub_u32 s{sBUD}, s{sBUD}, 1\ns_cbranch_scc1 {g}")
        if sleep: self.A(f"s_sleep {sleep}")
        self.far.append(f"{g}:\ns_mov_b32 s{sBUD}, 0\ns_branch {ok}")
        return r, ok
    def poll_end(self, h, cond="s_cbranch_vccnz"):
        self.A(f"{cond} {h[0]}\n{h[1]}:")
    def sentinel_check(self, regs, tmp):
        o = [f"v_max3_u32 v{tmp}, v{regs[0]}, v{regs[1]}, v{regs[2]}"] if len(regs) >= 3 else [f"v_max_u32 v{tmp}, v{regs[0]}, v{regs[-1]}"]
        rest = regs[3:]
        while len(rest) >= 2:
            o.append(f"v_max3_u32 v{tmp}, v{tmp}, v{rest[0]}, v{rest[1]}"); rest = rest[2:]
        if rest: o.append(f"v_max_u32 v{tmp}, v{tmp}, v{rest[0]}")
        o.append(f"v_cmp_eq_u32 vcc, -1, v{tmp}")
        return o
    def mode_store(self, stores):
        s, b = self.lab("slow"), self.lab("back")
        self.A(f"s_cmp_eq_u32 s{sMODE}, 0\ns_cbranch_scc1 {s}")
        for x in stores: self.A(x)
        self.A(f"{b}:")
        self.far.append(f"{s}:\n" + "\n".join(x + " sc1" for x in stores) + f"\ns_branch {b}")
    def interleave(self, a, b, lead=0):
        out = []; nb = len(b); na = len(a); j = 0
        for i, x in enumerate(a):
            out.append(x)
            if i >= lead:
                want = (i - lead + 1) * nb // max(1, na - lead)
                while j < want: out.append(b[j]); j += 1
        out += b[j:]
        for x in out: self.A(x)
    def red4(self, groups):
        A = self.A
        for (src, dst, bm) in ((0, 0, "0x3"), (1, 1, "0x3"), (2, 0, "0xc"), (3, 1, "0xc")):
            for g in groups: A(f"v_add_f32_dpp v{g+dst}, v{g+src}, v{g+src} row_ror:8 row_mask:0xf bank_mask:{bm}")
        for g in groups: A(f"v_add_f32_dpp v{g}, v{g}, v{g} row_shl:4 row_mask:0xf bank_mask:0x5")
        for g in groups: A(f"v_add_f32_dpp v{g}, v{g+1}, v{g+1} row_shr:4 row_mask:0xf bank_mask:0xa")
    def tr_reads(self, dst, vaddr, nsteps, rs, extra=0):
        for i in range(nsteps):
            for u in range(2):
                self.A(f"ds_read_b64_tr_b16 v[{dst+4*i+2*u}:{dst+4*i+2*u+1}], v{vaddr} offset:{(32*i+4*u)*rs+extra}")
    def dma(self, srd, voff, soff, step, m0, npieces):
        A = self.A
        for p in range(npieces):
            A(f"s_mov_b32 m0, s{m0}")
            A(f"s_add_u32 s{m0}, s{m0}, 1024")
            A(f"buffer_load_dwordx4 v{voff}, {srd}, s{soff} offen nt lds")
            A(f"s_add_u32 s{soff}, s{soff}, {step}")
    def kv_loads(self, which):
        srd, vo, base = (SK, 60, 0) if which == 0 else (SV, 61, 96)
        for t in range(8):
            for tau in range(3):
                so = "0" if t < 2 else f"s{62 + t//2}"
                r = base + 12*t + 4*tau
                self.A(f"buffer_load_dwordx4 a[{r}:{r+3}], v{vo}, {srd}, {so} offen offset:{(t&1)*3072+tau*256} nt")
    def stats_finish(self, s1, s2, t):
        return [f"v_mul_f32 v{vMU}, {hex(f2u(1/640))}, v{s1}",
                f"v_mul_f32 v{t}, v{vMU}, v{vMU}",
                f"v_mul_f32 v{s2}, {hex(f2u(1/640))}, v{s2}",
                f"v_sub_f32 v{t}, v{s2}, v{t}",
                f"v_max_f32 v{t}, 0, v{t}",
                f"v_add_f32 v{t}, {hex(f2u(1e-5))}, v{t}",
                f"v_rsq_f32 v{vRS}, v{t}"]
    def row_allreduce(self, regs):
        o = []
        for sh in (8, 4, 2, 1):
            for r in regs: o.append(f"v_add_f32_dpp v{r}, v{r}, v{r} row_ror:{sh} row_mask:0xf bank_mask:0xf")
        return o
    def stats_addr(self, v):
        A = self.A
        A(f"v_and_b32 v{v}, 15, v0\nv_lshrrev_b32 v{v+1}, 4, v0\nv_cmp_gt_u32 vcc, 4, v{v}")
        A(f"v_lshlrev_b32 v{v}, 6, v{v}\nv_lshl_add_u32 v{v}, v{v+1}, 4, v{v}\nv_add_u32 v{v+1}, 1024, v{v}")
        A(f"v_cndmask_b32 v{v+1}, v{v+2}, v{v+1}, vcc")
    def publish_x(self, soff_x, soff_st):
        A = self.A
        self.mode_store([f"buffer_store_dword v{vXP}, v56, {WS}, s{soff_x} offen"])
        A(f"v_mov_b32 v48, 0x3f803f80")
        for r in range(44, 48): A(f"v_mov_b32 v{r}, 0")
        A(f"v_dot2_f32_bf16 v44, v{vXP}, v48, v44\nv_dot2_f32_bf16 v45, v{vXP}, v{vXP}, v45")
        A(f"v_dot2_f32_bf16 v46, v{vXP}, v{vWR}, v46\nv_dot2_f32_bf16 v47, v48, v{vWR}, v47")
        self.red4([44])
        A("v_add_f32_dpp v44, v44, v44 quad_perm:[1,0,3,2] row_mask:0xf bank_mask:0xf")
        A("v_add_f32_dpp v44, v44, v44 quad_perm:[2,3,0,1] row_mask:0xf bank_mask:0xf")
        self.mode_store([f"buffer_store_dword v44, v57, {WS}, s{soff_st} offen"])
    def gather8(self, soff):
        A = self.A
        h = self.poll_begin()
        for k in range(4): A(f"buffer_load_dwordx4 v[{28+4*k}:{31+4*k}], v58, {WS}, s{soff} offen offset:{k*512} sc1")
        A("s_waitcnt vmcnt(0)")
        chk = self.sentinel_check(list(range(28, 44)), 52)
        for x in chk[:-1]: A(x)
        A("v_pk_add_f32 v[48:49], v[28:29], v[32:33]\nv_pk_add_f32 v[50:51], v[30:31], v[34:35]")
        A("v_pk_add_f32 v[44:45], v[36:37], v[40:41]\nv_pk_add_f32 v[46:47], v[38:39], v[42:43]")
        A(chk[-1])
        A("v_pk_add_f32 v[48:49], v[48:49], v[44:45]\nv_pk_add_f32 v[50:51], v[50:51], v[46:47]")
        self.poll_end(h)
        for (src, dst, bm) in ((48, 28, "0x3"), (49, 29, "0x3"), (50, 28, "0xc"), (51, 29, "0xc")):
            A(f"v_add_f32_dpp v{dst}, v{src}, v{src} row_ror:8 row_mask:0xf bank_mask:{bm}")
    def owner_addrs(self):
        A = self.A
        A("v_lshrrev_b32 v52, 4, v0\nv_bfe_u32 v53, v0, 3, 1\nv_and_b32 v54, 7, v0")
        A("v_lshrrev_b32 v56, 1, v54\nv_lshlrev_b32 v56, 6, v56\nv_lshl_add_u32 v56, v52, 4, v56")
        A("v_and_b32 v55, 1, v54\nv_lshl_add_u32 v56, v55, 3, v56\nv_lshl_add_u32 v56, v53, 2, v56")
        A("v_lshlrev_b32 v58, 7, v52\nv_lshl_add_u32 v58, v54, 4, v58\nv_lshl_add_u32 v58, v53, 11, v58")
        A("v_mul_u32_u24 v59, 1280, v52\nv_lshl_add_u32 v59, v54, 3, v59\nv_lshl_add_u32 v59, v53, 2, v59")
        A(f"v_bfe_u32 v57, v0, 2, 2\nv_lshlrev_b32 v57, 2, v57\nv_lshl_add_u32 v57, v52, 4, v57")
        A(f"v_and_b32 v55, 3, v0\nv_cmp_eq_u32 vcc, 0, v55\nv_mov_b32 v55, s{sHUGE}\nv_cndmask_b32 v57, v55, v57, vcc")
    def final_addrs(self):
        A = self.A
        A("v_lshrrev_b32 v52, 4, v0\nv_bfe_u32 v53, v0, 2, 2\nv_and_b32 v54, 3, v0")
        A(f"v_lshlrev_b32 v55, 9, v53\nv_lshl_add_u32 v55, v52, 6, v55\nv_lshl_add_u32 v55, v54, 4, v55\nv_add_u32 v55, {L_PQ}, v55")
    def q_store_addrs(self):
        A = self.A
        A("v_mul_u32_u24 v56, 384, v52\nv_lshl_add_u32 v56, v54, 3, v56\nv_lshl_add_u32 v56, v53, 1, v56")
        A(f"v_and_b32 v58, 1, v53\nv_cmp_eq_u32 vcc, 0, v58\nv_mov_b32 v58, s{sHUGE}\nv_cndmask_b32 v56, v58, v56, vcc")
        A("v_cmp_gt_u32 vcc, 2, v54\nv_add_u32 v57, 32, v56\nv_cndmask_b32 v57, v58, v57, vcc")
        A(f"s_mul_i32 s70, s{sHH}, 1536\ns_mul_i32 s71, s{sJ}, 48\ns_add_u32 s70, s70, s71\ns_add_u32 s70, s70, s{sLOC}")
    def q_final_tail(self):
        A = self.A
        A(f"v_fma_f32 v8, -v{vMU}, v{vCQ0}, v8\nv_fma_f32 v12, -v{vMU}, v{vCQ1}, v12")
        A(f"v_mul_f32 v8, v8, v{vRS}\nv_mul_f32 v12, v12, v{vRS}")
        A("v_mov_b32_dpp v9, v8 row_shl:4 row_mask:0xf bank_mask:0x5\nv_mov_b32_dpp v13, v12 row_shl:4 row_mask:0xf bank_mask:0x5")
        A("v_cvt_pk_bf16_f32 v8, v8, v9\nv_cvt_pk_bf16_f32 v12, v12, v13")
        self.mode_store([f"buffer_store_dword v8, v56, {WS}, s70 offen", f"buffer_store_dword v12, v57, {WS}, s70 offen"])
    def bq_addrs(self):
        A = self.A
        A("v_lshrrev_b32 v23, 4, v0\nv_and_b32 v24, 3, v0\nv_lshl_add_u32 v24, v23, 2, v24\nv_lshlrev_b32 v24, 4, v24")
        A(f"v_bfe_u32 v25, v0, 3, 1\nv_mov_b32 v26, s{sHUGE}\nv_cmp_eq_u32 vcc, 0, v25")
        A("v_add_u32 v22, 128, v24\nv_cndmask_b32 v20, v26, v24, vcc\nv_cndmask_b32 v22, v22, v26, vcc")
        A("v_mul_u32_u24 v27, 384, v25\nv_add_u32 v21, 256, v24\nv_sub_u32 v21, v21, v27")
        A("v_lshrrev_b32 v23, 1, v23\nv_cmp_eq_u32 vcc, v23, v25\nv_cndmask_b32 v21, v26, v21, vcc")
        A("v_and_b32 v23, 1, v0\nv_lshlrev_b32 v23, 4, v23\nv_mov_b32 v24, 0xffff\nv_lshlrev_b32 v24, v23, v24\nv_bfe_u32 v23, v0, 1, 2")
        for r in range(4): A(f"v_cmp_eq_u32 vcc, {r}, v23\nv_cndmask_b32 v{52+r}, 0, v24, vcc")
    def gemv5(self, soff, sleep=0):
        A = self.A
        h = self.poll_begin(sleep)
        for i in range(5): A(f"buffer_load_dwordx4 v[{28+4*i}:{31+4*i}], v{vACT}, {WS}, s{soff} offen offset:{i*256} sc1")
        A("s_waitcnt vmcnt(0) lgkmcnt(0)")
        m = [f"v_mfma_f32_16x16x32_bf16 v[48:51], v[{8+4*i}:{11+4*i}], v[{28+4*i}:{31+4*i}], {'0' if i == 0 else 'v[48:51]'}" for i in range(5)]
        self.interleave(m, self.sentinel_check(list(range(28, 48)), 53))
        self.poll_end(h)
    def part_write(self, regs="v[48:51]", off=0):
        self.exec(M_C4); self.A(f"ds_write_b128 v52, {regs} offset:{off}"); self.exec(-1)
    def part_addr(self):
        self.A(f"v_and_b32 v52, 15, v0\nv_lshlrev_b32 v52, 6, v52\nv_lshrrev_b32 v53, 4, v0\nv_lshl_add_u32 v52, v53, 4, v52")
        self.A(f"s_lshl_b32 s62, s{sW}, 8\ns_add_u32 s62, s62, {L_PQ}\nv_add_u32 v52, s62, v52")
    def light_stats_loads(self, soff):
        A = self.A
        A(f"buffer_load_dwordx2 v[16:17], v59, {WS}, s{soff} offen sc1\nbuffer_load_dwordx2 v[18:19], v60, {WS}, s{soff} offen sc1")
    def final_with_stats(self, soff):
        A = self.A
        A("ds_read_b128 v[8:11], v55\nds_read_b128 v[12:15], v55 offset:256")
        again, ok = self.lab("stre"), self.lab("stok")
        A("s_waitcnt vmcnt(0)")
        for x in self.sentinel_check([16, 17, 18, 19], 20): A(x)
        A(f"s_cbranch_vccnz {again}\n{ok}:")
        g = self.lab("give")
        self.far.append(f"{again}:\ns_sub_u32 s{sBUD}, s{sBUD}, 1\ns_cbranch_scc1 {g}\n"
                        f"buffer_load_dwordx2 v[16:17], v59, {WS}, s{soff} offen sc1\nbuffer_load_dwordx2 v[18:19], v60, {WS}, s{soff} offen sc1\n"
                        "s_waitcnt vmcnt(0)\n" + "\n".join(self.sentinel_check([16, 17, 18, 19], 20)) +
                        f"\ns_cbranch_vccnz {again}\ns_branch {ok}\n{g}:\ns_mov_b32 s{sBUD}, 0\ns_branch {ok}")
        A("v_pk_add_f32 v[16:17], v[16:17], v[18:19]")
        ar = self.row_allreduce([16, 17])
        for x in ar[:4]: A(x)
        A("s_waitcnt lgkmcnt(0)")
        red = Asm(); save = self.A; self.A = red; self.red4([8, 12]); self.A = save
        rest = ar[4:] + self.stats_finish(16, 17, 18)
        self.interleave(red.lines, rest)

    def build(self):
        A = self.A
        L_END = "L_end"
        self.stamp("start")
        A(f"s_cmp_ge_u32 s2, 256\ns_cbranch_scc1 {L_END}")
        A("s_load_dwordx16 s[32:47], s[0:1], 0\ns_load_dwordx8 s[48:55], s[0:1], 64\ns_load_dwordx2 s[56:57], s[0:1], 96")
        A(f"v_lshrrev_b32 v1, 6, v0\nv_and_b32 v0, 63, v0\nv_readfirstlane_b32 s{sW}, v1")
        A(f"s_and_b32 s{sX}, s2, 7\ns_lshr_b32 s{sR}, s2, 3\ns_lshr_b32 s{sHH}, s{sR}, 3\ns_and_b32 s{sJ}, s{sR}, 7")
        A(f"s_sub_u32 s{sW}, 7, s{sW}")
        A(f"s_lshr_b32 s{sB}, s{sJ}, 1\ns_and_b32 s62, s{sJ}, 1\ns_lshl_b32 s{sC}, s62, 2\ns_add_u32 s{sC}, s{sC}, s{sB}")
        A(f"s_and_b32 s{sT}, s{sW}, 1\ns_lshr_b32 s{sKQ}, s{sW}, 1")
        A(f"s_lshl_b32 s63, s{sB}, 5\ns_lshl_b32 s64, s{sX}, 2\ns_add_u32 s63, s63, s64\ns_add_u32 s63, s63, s{sHH}")
        A(f"s_mul_i32 s63, s63, 1572864\ns_lshl_b32 s62, s62, 3\ns_add_u32 s62, s62, s{sW}\ns_mul_i32 s62, s62, 24576")
        A(f"s_add_u32 s66, s63, s62\ns_add_u32 s66, s66, {3072*384}")
        A(f"s_mov_b32 s63, 6144\ns_mov_b32 s64, 12288\ns_mov_b32 s65, 18432")
        A(f"s_mov_b32 s{sHUGE}, {hex(HUGE)}\ns_mov_b32 s{sBUD}, 0x100000\ns_mov_b32 s{sL}, 0\ns_mov_b32 s{sMODE}, 0")
        A(f"s_mov_b32 s{sSC}, {hex(f2u(192 ** -0.5 * math.log2(math.e)))}")
        A(f"s_mul_i32 s{sLOC}, s{sX}, {XBLK}\ns_lshl_b32 s{sG1}, s{sR}, 12\ns_add_u32 s{sG1}, s{sG1}, {GBASE}")
        A("v_lshrrev_b32 v8, 4, v0\nv_and_b32 v9, 15, v0\nv_and_b32 v10, 3, v0\nv_bfe_u32 v11, v0, 2, 2")
        A("v_mul_u32_u24 v60, 768, v11\nv_lshl_add_u32 v12, v8, 2, v10\nv_lshl_add_u32 v60, v12, 4, v60")
        A("v_mul_u32_u24 v61, 768, v8\nv_lshl_add_u32 v61, v9, 4, v61")
        A(f"v_lshl_add_u32 v{vTR}, v8, 3, v11\nv_lshlrev_b32 v{vTR}, 5, v{vTR}\nv_lshl_add_u32 v{vTR}, v10, 3, v{vTR}")
        A(f"v_mov_b32 v13, s{sHUGE}\nv_cmp_gt_u32 vcc, 4, v9")
        A(f"v_lshlrev_b32 v{vACT}, 6, v8\nv_lshl_add_u32 v{vACT}, v9, 4, v{vACT}\nv_cndmask_b32 v{vACT}, v13, v{vACT}, vcc")
        A("v_mul_u32_u24 v59, 1280, v9\nv_lshl_add_u32 v59, v8, 4, v59\nv_cndmask_b32 v59, v13, v59, vcc")
        A(f"v_lshrrev_b32 v58, 1, v0\nv_mul_u32_u24 v58, 12288, v58\nv_and_b32 v14, 1, v0\nv_lshl_add_u32 v58, v14, 4, v58")
        A(f"v_and_b32 v14, s{sT}, v14\nv_cmp_eq_u32 vcc, 0, v14\nv_cndmask_b32 v58, v13, v58, vcc")
        A(f"v_mov_b32 v14, {L_CNT}\nv_mov_b32 v16, 0\nv_mov_b32 v17, 0")
        self.exec(1); A("ds_write_b64 v14, v[16:17]"); self.exec(-1)
        A(f"s_mul_i32 s67, s{sKQ}, {160*12288}\ns_mul_i32 s68, s{sX}, 1536\ns_add_u32 s67, s67, s68\ns_mul_i32 s68, s{sR}, 48")
        A(f"s_add_u32 s67, s67, s68\ns_lshl_b32 s68, s{sT}, 5\ns_add_u32 s67, s67, s68")
        A(f"s_mul_i32 s68, s{sW}, 5120\ns_add_u32 s68, s68, {L_WQ}\nv_add_u32 v54, s68, v{vTR}")
        A(f"s_mul_i32 s69, s{sKQ}, 320")
        A("s_waitcnt lgkmcnt(0)\ns_barrier")
        self.srd(SA, pWQ, 7864320); self.srd(SX, pAX, 5120)
        self.srd(SK, pK, 24576, 66); self.srd(SV, pV, 24576, 66); self.srd(WS, pWS, AREA)
        A(f"s_cmp_ge_u32 s{sW}, 4\ns_cbranch_scc1 L_old0\ns_setprio 3")
        A(f"s_cmp_eq_u32 s{sW}, 0\ns_cbranch_scc0 L_first")
        A("v_mov_b32 v16, -1\nv_mov_b32 v17, -1\nv_mov_b32 v18, -1\nv_mov_b32 v19, -1\nv_lshlrev_b32 v14, 4, v0\ns_lshl_b32 s70, s2, 12")
        for k in range(4): A(f"buffer_store_dwordx4 v[16:19], v14, {WS}, s70 offen offset:{k*1024} sc1")
        A("s_branch L_first")
        A("L_old0:\ns_setprio 2")
        A("L_first:")
        self.dma(SA, 58, 67, 32*12288, 68, 5)
        for i in range(5): A(f"buffer_load_dwordx4 v[{28+4*i}:{31+4*i}], v59, {SX}, s69 offen offset:{i*64}")
        A(f"s_cmp_ge_u32 s{sW}, 4\ns_cbranch_scc0 L_young1")
        self.kv_loads(0)
        A("s_waitcnt vmcnt(24)\ns_branch L_qpart\nL_young1:\ns_waitcnt vmcnt(0)\nL_qpart:")
        self.tr_reads(8, 54, 5, 32)
        self.part_addr()
        for r in range(56, 60): A(f"v_mov_b32 v{r}, 0x3f803f80")
        A("s_waitcnt lgkmcnt(0)")
        for i in range(5):
            A(f"v_mfma_f32_16x16x32_bf16 v[48:51], v[{8+4*i}:{11+4*i}], v[{28+4*i}:{31+4*i}], {'0' if i == 0 else 'v[48:51]'}")
        for i in range(5):
            A(f"v_mfma_f32_16x16x32_bf16 v[28:31], v[{8+4*i}:{11+4*i}], v[56:59], {'0' if i == 0 else 'v[28:31]'}")
        self.exec(M_C4); A("ds_write_b128 v52, v[48:51]\nds_write_b128 v52, v[28:31] offset:2048")
        self.exec(1); A(f"v_mov_b32 v8, {L_CNT}\nv_mov_b32 v9, 1\ns_waitcnt lgkmcnt(0)\nds_add_u32 v8, v9"); self.exec(-1)
        A(f"s_cmp_ge_u32 s{sW}, 4\ns_cbranch_scc1 L_vload\ns_cmp_eq_u32 s{sW}, 0\ns_cbranch_scc0 L_kload2")
        self.stamp("c_qpart")
        A("s_getreg_b32 s67, hwreg(HW_REG_XCC_ID, 0, 4)\ns_mul_i32 s68, s67, s67\ns_lshl_b32 s68, s68, 15\ns_lshl_b32 s67, s67, 6")
        A("s_add_u32 s67, s67, s68\ns_add_u32 s67, s67, 1")
        A(f"s_and_b32 s68, s{sX}, 1\ns_lshl_b32 s68, s68, 7\ns_lshr_b32 s69, s{sX}, 1\ns_lshl_b32 s69, s69, 2\ns_add_u32 s68, s68, s69")
        A("v_mov_b32 v8, s68\nv_mov_b32 v9, s67")
        self.exec(1); A(f"global_atomic_add v8, v9, s[{pDBG}:{pDBG+1}]"); self.exec(-1)
        A("v_lshrrev_b32 v10, 4, v0\nv_and_b32 v11, 15, v0\nv_mul_u32_u24 v10, 1280, v10\nv_lshl_add_u32 v10, v11, 4, v10")
        for k in range(5): A(f"buffer_load_dwordx4 v[{28+4*k}:{31+4*k}], v10, {SX}, 0 offen offset:{k*256}")
        self.owner_addrs()
        A(f"s_lshl_b32 s70, s{sR}, 6")
        A(f"buffer_load_dword v{vXP}, v59, {SX}, s70 offen")
        self.srd(SA, pWR, 1280)
        A("v_and_b32 v11, 7, v0\nv_bfe_u32 v12, v0, 3, 1\nv_lshlrev_b32 v11, 3, v11\nv_lshl_add_u32 v11, v12, 2, v11")
        A(f"buffer_load_dword v{vWR}, v11, {SA}, s70 offen")
        A(f"s_getpc_b64 s[70:71]\nL_pc:\ns_sub_u32 s70, s70, L_pc-{KNAME}\ns_subb_u32 s71, s71, 0")
        A(f"s_lshl_b32 s69, s{sR}, 10\nv_lshl_add_u32 v11, v0, 4, s69\nv_min_u32 v11, L_codeend-{KNAME}-16, v11")
        A("global_load_dwordx4 v[12:15], v11, s[70:71]")
        A("v_mov_b32 v16, 0\nv_mov_b32 v17, 0\nv_mov_b32 v18, 0x3f803f80\ns_waitcnt vmcnt(3)")
        for r in range(28, 48): A(f"v_dot2_f32_bf16 v16, v{r}, v18, v16\nv_dot2_f32_bf16 v17, v{r}, v{r}, v17")
        for x in self.row_allreduce([16, 17]) + self.stats_finish(16, 17, 18): A(x)
        A("v_and_b32 v10, 1, v0\nv_lshlrev_b32 v10, 7, v10\nv_bfe_u32 v11, v0, 1, 2\nv_lshl_add_u32 v10, v11, 2, v10")
        h = self.poll_begin(sleep=4)
        A(f"global_load_dword v11, v10, s[{pDBG}:{pDBG+1}] sc1\ns_waitcnt vmcnt(0)\nv_and_b32 v12, 63, v11\nv_cmp_ne_u32 vcc, 32, v12")
        self.poll_end(h)
        A(f"v_readlane_b32 s68, v11, s{sX}\ns_lshl_b32 s67, s67, 5\ns_cmp_eq_u32 s68, s67\ns_cselect_b32 s{sMODE}, 1, 0")
        if self.force_slow: A(f"s_mov_b32 s{sMODE}, 0")
        self.stamp("c_flags")
        A(f"s_mul_i32 s68, s{sR}, 2112\ns_add_u32 s68, s68, s{sLOC}\nv_lshlrev_b32 v10, 6, v0\nv_cmp_gt_u32 vcc, 33, v0")
        A(f"v_mov_b32 v11, s{sHUGE}\nv_cndmask_b32 v10, v11, v10, vcc\nbuffer_load_dword v12, v10, {WS}, s68 offen sc1")
        self.final_addrs(); self.q_store_addrs()
        A(f"v_mov_b32 v20, {L_CNT}")
        h = self.poll_begin(sleep=1)
        A("ds_read_b32 v21, v20\ns_waitcnt lgkmcnt(0)\nv_cmp_ne_u32 vcc, 8, v21")
        self.poll_end(h)
        A("s_waitcnt vmcnt(0)")
        A("ds_read_b128 v[8:11], v55\nds_read_b128 v[12:15], v55 offset:256\nds_read_b128 v[16:19], v55 offset:2048\nds_read_b128 v[20:23], v55 offset:2304")
        A("s_waitcnt lgkmcnt(0)")
        self.red4([8, 12, 16, 20])
        A(f"v_mov_b32 v{vCQ0}, v16\nv_mov_b32 v{vCQ1}, v20\nv_lshlrev_b32 v24, 2, v0")
        A(f"ds_write_b32 v24, v16 offset:{L_CS}\nds_write_b32 v24, v20 offset:{L_CS+256}")
        self.q_final_tail()
        A(f"v_lshlrev_b32 v24, 4, v0\nv_cmp_gt_u32 vcc, 24, v0\nv_mov_b32 v25, s{sHUGE}\nv_cndmask_b32 v25, v25, v24, vcc")
        A(f"s_mul_i32 s70, s{sHH}, 1536\ns_mul_i32 s71, s{sB}, 384\ns_add_u32 s70, s70, s71\ns_add_u32 s70, s70, s{sLOC}")
        h = self.poll_begin()
        A(f"buffer_load_dwordx4 v[8:11], v25, {WS}, s70 offen sc1\ns_waitcnt vmcnt(0)")
        for x in self.sentinel_check([8, 9, 10, 11], 12): A(x)
        self.poll_end(h)
        self.exec((1 << 25) - 1); A(f"ds_write_b128 v24, v[8:11] offset:{L_QB}")
        self.exec(1); A(f"v_mov_b32 v12, {L_CNT}\nv_add_u32 v13, 1, s{sMODE}\ns_waitcnt lgkmcnt(0)\nds_write_b32 v12, v13 offset:4"); self.exec(-1)
        self.stamp("c_q")
        A("L_kload2:\ns_setprio 1")
        self.kv_loads(0)
        A("L_vload:")
        self.kv_loads(1)
        self.bq_addrs()
        A(f"v_mov_b32 v23, {L_CNT}")
        for r in (20, 21, 22): A(f"v_min_u32 v{r}, 384, v{r}")
        h = self.poll_begin(sleep=1)
        A("ds_read_b32 v24, v23 offset:4\ns_waitcnt lgkmcnt(0)\nv_cmp_eq_u32 vcc, 0, v24")
        self.poll_end(h)
        A(f"v_readfirstlane_b32 s{sMODE}, v24")
        for k in range(3): A(f"ds_read_b128 v[{8+4*k}:{11+4*k}], v{20+k} offset:{L_QB}")
        A(f"s_sub_u32 s{sMODE}, s{sMODE}, 1\ns_max_i32 s{sMODE}, s{sMODE}, 0\ns_waitcnt lgkmcnt(0)")
        A("L_att:")
        self.stamp("att0")
        D = lambda t: 20 + 4 * t
        mf = []
        for t in range(8):
            if t % 2 == 0: mf.append(f"s_waitcnt vmcnt({42 - 3*t})")
            for tau in range(3):
                mf.append(f"v_mfma_f32_16x16x32_bf16 v[{D(t)}:{D(t)+3}], a[{12*t+4*tau}:{12*t+4*tau+3}], v[{8+4*tau}:{11+4*tau}], {'0' if tau == 0 else f'v[{D(t)}:{D(t)+3}]'}")
        def ext(ta, tb):
            o = []
            for k in range(4):
                for t in (ta, tb):
                    qp = f"quad_perm:[{k},{k},{k},{k}] row_mask:0xf bank_mask:0xf"
                    o.append(f"v_mov_b32_dpp v{D(t)}, v{D(t)} {qp}" if k == 0 else f"v_add_f32_dpp v{D(t)}, v{D(t)+k}, v{D(t)} {qp}")
            return o
        for x in mf[:14]: A(x)
        def weave(m, e):
            A(m[0]); A(m[1]); A(m[2])
            for k in range(4):
                A(e[2*k]); A(e[2*k+1]); A(m[3+k])
        weave(mf[14:21], ext(0, 1)); weave(mf[21:28], ext(2, 3))
        e45, e67 = ext(4, 5), ext(6, 7)
        A(e45[0]); A(e45[1]); A(f"v_max3_f32 v21, v{D(0)}, v{D(1)}, v{D(2)}"); A(e45[2]); A(e45[3]); A(f"v_max_f32 v21, v21, v{D(3)}")
        A(e45[4]); A(e45[5]); A(e67[0]); A(e67[1]); A(e45[6]); A(e45[7]); A(e67[2]); A(e67[3])
        A(f"v_max3_f32 v21, v21, v{D(4)}, v{D(5)}")
        for x in e67[4:]: A(x)
        A(f"v_max3_f32 v21, v21, v{D(6)}, v{D(7)}")
        A("v_max_f32_dpp v21, v21, v21 row_ror:8 row_mask:0xf bank_mask:0xf")
        A("v_mov_b32 v22, v21\nv_permlane16_swap_b32 v22, v21\nv_max_f32 v21, v21, v22")
        A("v_mov_b32 v22, v21\nv_permlane32_swap_b32 v22, v21\nv_max_f32 v21, v21, v22")
        A(f"v_mul_f32 v22, s{sSC}, v21")
        def pv_pre(t):
            ab = 56 + 4 * (t & 1)
            o = [f"v_fma_f32 v{D(t)}, v{D(t)}, s{sSC}, -v22", f"v_exp_f32 v{D(t)}, v{D(t)}"]
            o2 = [f"v_cvt_pk_bf16_f32 v{D(t)+3}, v{D(t)}, v{D(t)}"] + [f"v_and_b32 v{ab+r}, v{D(t)+3}, v{52+r}" for r in range(4)]
            return o, o2
        def pv_mf(t):
            ab = 56 + 4 * (t & 1)
            return [f"v_mfma_f32_16x16x32_bf16 v[{8+4*tau}:{11+4*tau}], v[{ab}:{ab+3}], a[{96+12*t+4*tau}:{96+12*t+4*tau+3}], {'0' if t == 0 else f'v[{8+4*tau}:{11+4*tau}]'}" for tau in range(3)]
        e0, c0 = pv_pre(0); e1, c1 = pv_pre(1)
        A(e0[0]); A(e1[0]); A(e0[1]); A(e1[1])
        for x in c0: A(x)
        for t in range(8):
            m = pv_mf(t)
            fill = []
            if t + 1 < 8: fill += pv_pre(t + 1)[1]
            if t + 2 < 8: fill = pv_pre(t + 2)[0] + fill
            if t == 1: fill.append(f"v_add_f32 v23, v{D(0)}, v{D(1)}")
            if t >= 2: fill.append(f"v_add_f32 v23, v23, v{D(t)}")
            A(f"s_waitcnt vmcnt({21 - 3*t})")
            A(m[0])
            for x in fill[:3]: A(x)
            A(m[1])
            for x in fill[3:6]: A(x)
            A(m[2])
            for x in fill[6:]: A(x)
        A("v_and_b32 v24, 15, v0\nv_lshlrev_b32 v24, 5, v24\nv_bfe_u32 v25, v0, 4, 1")
        A("v_add_f32_dpp v23, v23, v23 row_ror:8 row_mask:0xf bank_mask:0xf")
        A(f"v_lshl_add_u32 v24, v25, 4, v24\ns_mul_i32 s62, s{sW}, {PA_STR}\ns_add_u32 s62, s62, {L_PA}\nv_add_u32 v24, s62, v24")
        A("v_mov_b32 v26, v23\nv_lshrrev_b32 v25, 5, v0\nv_lshl_add_u32 v25, v25, 10, v24\nv_permlane16_swap_b32 v26, v23\nv_add_f32 v23, v23, v26")
        A(f"v_mov_b32 v26, v23\ns_lshl_b32 s62, s{sW}, 3\nv_mov_b32 v27, s62\nv_permlane32_swap_b32 v26, v23\nv_add_f32 v23, v23, v26")
        A("s_mov_b32 exec_hi, 0\nds_write_b128 v25, v[8:11]\ns_mov_b32 exec_lo, 0\ns_mov_b32 exec_hi, -1\nds_write_b128 v25, v[16:19]")
        self.exec(0xFF00FF0000FF00FF); A("ds_write_b128 v24, v[12:15] offset:512")
        self.exec(1); A(f"ds_write_b64 v27, v[22:23] offset:{L_ML}"); self.exec(-1)
        A(f"s_cmp_eq_u32 s{sL}, 0\ns_cbranch_scc0 L_nolate\ns_cmp_ge_u32 s{sW}, 4\ns_cbranch_scc0 L_nolate\ns_setprio 0")
        A(f"s_cmp_lt_u32 s{sR}, 20\ns_cbranch_scc0 L_late_gu")
        self.srd(SA, pWO, 7864320)
        A("v_lshrrev_b32 v28, 2, v0\nv_mul_u32_u24 v28, 1280, v28\nv_and_b32 v29, 3, v0\nv_lshl_add_u32 v28, v29, 4, v28")
        A(f"s_mul_i32 s66, s{sX}, {768*1280}\ns_lshl_b32 s67, s{sR}, 6\ns_add_u32 s66, s66, s67")
        for dw in (4, 0):
            A(f"s_sub_u32 s69, s{sW}, {dw}\ns_mul_i32 s67, s69, {96*1280}\ns_add_u32 s67, s67, s66\ns_mul_i32 s68, s69, 6144\ns_add_u32 s68, s68, {L_W2}")
            self.dma(SA, 28, 67, 16*1280, 68, 6)
        A("s_branch L_nolate\nL_late_gu:")
        A(f"s_cmp_eq_u32 s{sT}, 0\ns_cselect_b32 s16, s{pG}, s{pU}\ns_cselect_b32 s17, s{pG+1}, s{pU+1}\ns_mov_b32 s18, 1966080\ns_mov_b32 s19, 0x20000")
        A("v_lshrrev_b32 v28, 1, v0\nv_mul_u32_u24 v28, 3072, v28\nv_and_b32 v29, 1, v0\nv_lshl_add_u32 v28, v29, 4, v28")
        A(f"s_mul_i32 s66, s{sX}, 384\ns_sub_u32 s67, s{sR}, 20\ns_lshl_b32 s67, s67, 5\ns_add_u32 s66, s66, s67")
        for dw in (4, 0):
            A(f"s_sub_u32 s69, s{sW}, {dw}\ns_lshr_b32 s67, s69, 1\ns_mul_i32 s67, s67, {160*3072}\ns_add_u32 s67, s67, s66\ns_mul_i32 s68, s69, 5120\ns_add_u32 s68, s68, {L_W2}")
            self.dma(SA, 28, 67, 32*3072, 68, 5)
        A("L_nolate:")
        A(f"v_lshrrev_b32 v28, 3, v0\nv_and_b32 v29, 7, v0\nv_mul_u32_u24 v30, {PA_STR}, v28\nv_lshl_add_u32 v30, v29, 4, v30")
        A(f"s_mul_i32 s62, s{sW}, 96\ns_add_u32 s62, s62, {L_PA}\nv_add_u32 v30, s62, v30\nv_lshlrev_b32 v28, 3, v28")
        A("v_lshrrev_b32 v31, 1, v29\nv_lshlrev_b32 v31, 7, v31\nv_and_b32 v32, 1, v29\nv_lshl_add_u32 v31, v32, 3, v31\nv_lshrrev_b32 v32, 5, v0\nv_lshl_add_u32 v31, v32, 2, v31")
        A(f"v_and_b32 v32, 31, v0\nv_cmp_gt_u32 vcc, 6, v32\nv_mov_b32 v33, s{sHUGE}\nv_cndmask_b32 v31, v33, v31, vcc")
        A(f"v_cmp_eq_u32 vcc, s{sW}, v0\nv_cndmask_b32 v33, v33, v0, vcc\nv_cmp_eq_u32 vcc, 0, v33\nv_mov_b32 v34, s{sHUGE}\nv_cndmask_b32 v33, v34, v33, vcc")
        A(f"s_mul_i32 s62, s{sHH}, 3072\ns_mul_i32 s63, s{sW}, 384\ns_add_u32 s62, s62, s63\ns_lshl_b32 s63, s{sC}, 4\ns_add_u32 s62, s62, s63")
        A(f"s_add_u32 s62, s62, s{sLOC}\ns_add_u32 s62, s62, {LOC_O5}")
        A(f"s_lshl_b32 s63, s{sHH}, 5\ns_lshl_b32 s64, s{sC}, 2\ns_add_u32 s63, s63, s64\ns_add_u32 s63, s63, s{sLOC}\ns_add_u32 s63, s63, {LOC_LSE}")
        self.stamp("att_end")
        A("s_waitcnt lgkmcnt(0)\ns_barrier")
        A(f"ds_read_b64 v[16:17], v28 offset:{L_ML}\nds_read_b128 v[8:11], v30\nds_read_b128 v[12:15], v30 offset:768")
        A("s_waitcnt lgkmcnt(2)")
        A("v_max_f32_dpp v18, v16, v16 row_ror:8 row_mask:0xf bank_mask:0xf")
        A("v_mov_b32 v19, v18\nv_permlane16_swap_b32 v19, v18\nv_max_f32 v18, v18, v19")
        A("v_mov_b32 v19, v18\ns_waitcnt lgkmcnt(0)\nv_pk_add_f32 v[8:9], v[8:9], v[12:13]\nv_permlane32_swap_b32 v19, v18\nv_max_f32 v18, v18, v19")
        A("v_sub_f32 v16, v16, v18\nv_exp_f32 v16, v16\nv_pk_add_f32 v[10:11], v[10:11], v[14:15]\nv_mul_f32 v17, v17, v16")
        A("v_mul_f32 v8, v8, v16\nv_mul_f32 v10, v10, v16")
        A("v_add_f32_dpp v17, v17, v17 row_ror:8 row_mask:0xf bank_mask:0xf")
        A("v_mul_f32 v9, v9, v16\nv_mul_f32 v11, v11, v16\nv_mov_b32 v19, v17")
        A("v_permlane32_swap_b32 v8, v10\nv_permlane32_swap_b32 v9, v11\nv_permlane16_swap_b32 v19, v17")
        A("v_add_f32 v8, v8, v10\nv_add_f32 v9, v9, v11\nv_add_f32 v17, v17, v19\nv_mov_b32 v19, v17")
        A("v_permlane16_swap_b32 v8, v9\nv_permlane32_swap_b32 v19, v17\nv_add_f32 v8, v8, v9\nv_add_f32 v17, v17, v19")
        A("v_rcp_f32 v19, v17\nv_log_f32 v17, v17\nv_add_f32_dpp v8, v8, v8 row_ror:8 row_mask:0xf bank_mask:0xf")
        A("v_mul_f32 v8, v8, v19\nv_add_f32 v17, v17, v18\nv_mov_b32 v9, v8\nv_permlane16_swap_b32 v9, v8\nv_cvt_pk_bf16_f32 v8, v9, v8")
        self.mode_store([f"buffer_store_dword v8, v31, {WS}, s62 offen", f"buffer_store_dword v17, v33, {WS}, s63 offen"])
        self.stamp("o_pub")
        A(f"s_cmp_eq_u32 s{sW}, 0\ns_cbranch_scc0 L_np0\ns_setprio 3\nL_np0:")
        A(f"s_cmp_lt_u32 s{sR}, 20\ns_cbranch_scc0 L_gu")
        A(f"v_lshrrev_b32 v57, 4, v0\nv_and_b32 v58, 15, v0\nv_and_b32 v59, 3, v0\nv_bfe_u32 v60, v0, 2, 2")
        A(f"v_lshl_add_u32 v56, v57, 3, v60\nv_lshlrev_b32 v56, 6, v56\nv_lshl_add_u32 v56, v59, 3, v56")
        A(f"s_mul_i32 s62, s{sW}, 6144\ns_add_u32 s62, s62, {L_W2}\nv_add_u32 v56, s62, v56")
        A(f"v_cmp_gt_u32 vcc, 8, v58\nv_mov_b32 v61, s{sHUGE}\nv_lshlrev_b32 v59, 7, v57\nv_lshl_add_u32 v59, v58, 4, v59\nv_cndmask_b32 v59, v61, v59, vcc")
        A("v_lshlrev_b32 v60, 2, v58\nv_xor_b32 v62, 16, v60\nv_cndmask_b32 v60, v61, v60, vcc\nv_cndmask_b32 v61, v61, v62, vcc")
        A(f"v_lshlrev_b32 v58, 6, v58\nv_lshl_add_u32 v58, v57, 4, v58\ns_lshl_b32 s62, s{sW}, 9\ns_add_u32 s62, s62, {L_PO}\nv_add_u32 v58, s62, v58")
        A(f"s_mul_i32 s62, s{sW}, 1536\ns_add_u32 s62, s62, s{sLOC}\ns_add_u32 s62, s62, {LOC_O5}")
        A(f"s_lshl_b32 s63, s{sKQ}, 5\ns_add_u32 s63, s63, s{sLOC}\ns_add_u32 s63, s63, {LOC_LSE}")
        A("s_waitcnt vmcnt(0)\ns_barrier")
        self.stamp("wo_ok")
        self.tr_reads(8, 56, 3, 64); self.tr_reads(20, 56, 3, 64, extra=32)
        h = self.poll_begin()
        for i in range(3): A(f"buffer_load_dwordx4 v[{32+4*i}:{35+4*i}], v59, {WS}, s62 offen offset:{i*512} sc1")
        A(f"buffer_load_dword v44, v60, {WS}, s63 offen sc1\nbuffer_load_dword v45, v61, {WS}, s63 offen sc1")
        A("s_waitcnt vmcnt(0) lgkmcnt(0)")
        m = []
        for i in range(3):
            for t in range(2):
                m.append(f"v_mfma_f32_16x16x32_bf16 v[{48+4*t}:{51+4*t}], v[{8+12*t+4*i}:{11+12*t+4*i}], v[{32+4*i}:{35+4*i}], {'0' if i == 0 else f'v[{48+4*t}:{51+4*t}]'}")
        chk = self.sentinel_check(list(range(32, 46)), 47)
        self.interleave(m, ["v_sub_f32 v46, v45, v44", "v_exp_f32 v46, v46"] + chk[:3] + ["v_add_f32 v46, 1.0, v46", "v_rcp_f32 v46, v46"] + chk[3:])
        self.poll_end(h)
        for r in range(48, 56): A(f"v_mul_f32 v{r}, v{r}, v46")
        for r in range(48, 56): A(f"v_add_f32_dpp v{r}, v{r}, v{r} row_shl:4 row_mask:0xf bank_mask:0x1")
        self.exec(M_C4); A("ds_write_b128 v58, v[48:51]\nds_write_b128 v58, v[52:55] offset:256"); self.exec(-1)
        A(f"s_cmp_eq_u32 s{sW}, 0\ns_cbranch_scc0 L_own_rest")
        A("v_lshrrev_b32 v24, 4, v0\nv_bfe_u32 v25, v0, 3, 1\nv_bfe_u32 v26, v0, 2, 1\nv_and_b32 v27, 3, v0")
        A(f"v_lshlrev_b32 v24, 6, v24\nv_lshl_add_u32 v24, v25, 11, v24\nv_lshl_add_u32 v24, v26, 8, v24\nv_lshl_add_u32 v24, v27, 4, v24\nv_add_u32 v24, {L_PO}, v24")
        self.owner_addrs()
        A(f"v_cmp_eq_u32 vcc, 0, v53\nv_cndmask_b32 v25, v55, v58, vcc")
        A(f"s_lshl_b32 s62, s{sX}, 9\ns_add_u32 s62, s62, s{sG1}")
        A(f"s_lshl_b32 s63, s{sR}, 8\ns_add_u32 s63, s63, s{sLOC}\ns_add_u32 s63, s63, {LOC_X1}")
        A(f"s_lshl_b32 s64, s{sR}, 6\ns_add_u32 s64, s64, s{sLOC}\ns_add_u32 s64, s64, {LOC_ST1}")
        A("s_waitcnt lgkmcnt(0)\ns_barrier")
        for k in range(4): A(f"ds_read_b128 v[{8+4*k}:{11+4*k}], v24 offset:{k*512}")
        A("s_waitcnt lgkmcnt(2)\nv_pk_add_f32 v[8:9], v[8:9], v[12:13]\nv_pk_add_f32 v[10:11], v[10:11], v[14:15]")
        A("s_waitcnt lgkmcnt(0)\nv_pk_add_f32 v[16:17], v[16:17], v[20:21]\nv_pk_add_f32 v[18:19], v[18:19], v[22:23]")
        A("v_pk_add_f32 v[8:9], v[8:9], v[16:17]\nv_pk_add_f32 v[10:11], v[10:11], v[18:19]")
        for r in range(8, 12): A(f"v_add_f32_dpp v{r}, v{r}, v{r} row_ror:8 row_mask:0xf bank_mask:0xf")
        A(f"buffer_store_dwordx4 v[8:11], v25, {WS}, s62 offen sc1")
        self.stamp("r1_pub")
        A(f"v_lshlrev_b32 v12, 16, v{vXP}\nv_and_b32 v13, 0xffff0000, v{vXP}")
        self.gather8(sG1)
        A(f"v_add_f32 v28, v28, v12\nv_add_f32 v29, v29, v13\nv_cvt_pk_bf16_f32 v{vXP}, v28, v29")
        self.publish_x(63, 64)
        self.stamp("x1_pub")
        A(f"v_mov_b32 v62, s{sHUGE}"); self.stats_addr(60)
        A(f"s_add_u32 s64, s{sLOC}, {LOC_ST1}")
        h = self.poll_begin()
        A(f"buffer_load_dwordx4 v[28:31], v60, {WS}, s64 offen sc1\nbuffer_load_dwordx4 v[32:35], v61, {WS}, s64 offen sc1\ns_waitcnt vmcnt(0)")
        for x in self.sentinel_check(list(range(28, 36)), 36): A(x)
        self.poll_end(h)
        A("v_pk_add_f32 v[28:29], v[28:29], v[32:33]\nv_pk_add_f32 v[30:31], v[30:31], v[34:35]")
        for x in self.row_allreduce([28, 29, 30, 31]) + self.stats_finish(28, 29, 32): A(x)
        A(f"v_fma_f32 v30, -v{vMU}, v31, v30\nv_mul_f32 v30, v30, v{vRS}\nv_mul_f32 v30, {hex(f2u(-math.log2(math.e)))}, v30")
        A(f"v_exp_f32 v30, v30\nv_add_f32 v30, 1.0, v30\nv_rcp_f32 v{vSG}, v30")
        A(f"v_lshlrev_b32 v60, 16, v{vXP}\nv_and_b32 v61, 0xffff0000, v{vXP}\nv_sub_f32 v30, v60, v{vMU}\nv_sub_f32 v31, v61, v{vMU}")
        A(f"v_fma_f32 v60, v30, v{vRS}, v60\nv_fma_f32 v61, v31, v{vRS}, v61")
        A(f"s_add_u32 s65, s{sG1}, {G3}")
        A(f"s_cmp_eq_u32 s{sL}, 0\ns_cbranch_scc0 L_last")
        A(f"v_add_u32 v55, {L_WQ}, v{vTR}")
        self.tr_reads(8, 55, 5, 32)
        A(f"s_lshl_b32 s63, s{sR}, 8\ns_add_u32 s63, s63, s{sLOC}\ns_add_u32 s63, s63, {LOC_X2}")
        A(f"s_lshl_b32 s64, s{sR}, 6\ns_add_u32 s64, s64, s{sLOC}\ns_add_u32 s64, s64, {LOC_ST2}")
        A("s_barrier")
        self.gather8(65)
        A(f"v_fma_f32 v28, v28, v{vSG}, v60\nv_fma_f32 v29, v29, v{vSG}, v61\nv_cvt_pk_bf16_f32 v{vXP}, v28, v29")
        self.publish_x(63, 64)
        self.stamp("x2_pub")
        A("s_branch L_q2")
        A("L_last:")
        A(f"s_and_b32 s62, s{sR}, 7\ns_cmp_eq_u32 s62, s{sX}\ns_cbranch_scc0 L_fin")
        self.srd(SX, pOUT, 5120)
        A(f"s_lshl_b32 s62, s{sR}, 6")
        self.gather8(65)
        A(f"v_fma_f32 v28, v28, v{vSG}, v60\nv_fma_f32 v29, v29, v{vSG}, v61\nv_cvt_pk_bf16_f32 v28, v28, v29")
        A(f"buffer_store_dword v28, v59, {SX}, s62 offen")
        A("s_branch L_fin")
        A("L_own_rest:")
        A(f"s_cmp_eq_u32 s{sKQ}, 1\ns_cbranch_scc1 L_down")
        A("s_waitcnt lgkmcnt(0)\ns_barrier")
        A(f"s_cmp_eq_u32 s{sL}, 0\ns_cbranch_scc0 L_fin\ns_branch L_q2pre")
        A("L_down:\ns_setprio 2")
        A(f"s_mul_i32 s68, s{sT}, 6144\ns_add_u32 s68, s68, {L_W2 + 49152}\nv_add_u32 v60, s68, v{vTR}")
        A(f"s_cmp_eq_u32 s{sL}, 0\ns_cbranch_scc0 L_down1")
        self.srd(SA, pD, 1966080)
        A("v_lshrrev_b32 v61, 1, v0\nv_mul_u32_u24 v61, 1280, v61\nv_and_b32 v62, 1, v0\nv_lshl_add_u32 v61, v62, 4, v61")
        A(f"s_mul_i32 s67, s{sX}, {192*1280}\ns_lshl_b32 s66, s{sR}, 6\ns_add_u32 s67, s67, s66\ns_lshl_b32 s66, s{sT}, 5\ns_add_u32 s67, s67, s66")
        self.dma(SA, 61, 67, 32*1280, 68, 6)
        A("L_down1:")
        A("s_waitcnt lgkmcnt(0)\ns_barrier\ns_waitcnt vmcnt(0)")
        self.tr_reads(8, 60, 6, 32)
        A(f"v_and_b32 v61, 15, v0\nv_cmp_gt_u32 vcc, 4, v61\nv_lshlrev_b32 v61, 7, v61\nv_lshrrev_b32 v62, 4, v0\nv_lshl_add_u32 v61, v62, 4, v61")
        A(f"v_mov_b32 v62, s{sHUGE}\nv_cndmask_b32 v61, v62, v61, vcc")
        A(f"s_add_u32 s62, s{sLOC}, {LOC_H}\ns_lshl_b32 s63, s{sX}, 9\ns_add_u32 s63, s63, s{sG1}\ns_lshl_b32 s64, s{sT}, 6\ns_add_u32 s63, s63, s64\ns_add_u32 s63, s63, {G3}")
        h = self.poll_begin(sleep=1)
        for i in range(6): A(f"buffer_load_dwordx4 v[{32+4*i}:{35+4*i}], v{vACT}, {WS}, s62 offen offset:{i*256} sc1")
        A("s_waitcnt vmcnt(0) lgkmcnt(0)")
        m = [f"v_mfma_f32_16x16x32_bf16 v[56:59], v[{8+4*i}:{11+4*i}], v[{32+4*i}:{35+4*i}], {'0' if i == 0 else 'v[56:59]'}" for i in range(6)]
        self.interleave(m, self.sentinel_check(list(range(32, 56)), 62))
        self.poll_end(h)
        A(f"buffer_store_dwordx4 v[56:59], v61, {WS}, s63 offen sc1")
        A(f"s_cmp_eq_u32 s{sL}, 0\ns_cbranch_scc0 L_fin")
        A("L_q2pre:")
        A(f"s_mul_i32 s68, s{sW}, 5120\ns_add_u32 s68, s68, {L_WQ}\nv_add_u32 v55, s68, v{vTR}")
        self.tr_reads(8, 55, 5, 32)
        A("s_barrier\ns_branch L_q2")
        A("L_gu:")
        A(f"s_mul_i32 s68, s{sW}, 5120\ns_add_u32 s68, s68, {L_W2}\nv_add_u32 v54, s68, v{vTR}")
        self.part_addr()
        A(f"s_mul_i32 s66, s{sKQ}, 1280\ns_add_u32 s66, s66, s{sLOC}\ns_add_u32 s66, s66, {LOC_X1}\ns_add_u32 s67, s{sLOC}, {LOC_ST1}")
        A("s_waitcnt vmcnt(0)\ns_barrier")
        self.stamp("wo_ok")
        self.tr_reads(8, 54, 5, 32)
        A(f"v_mov_b32 v63, v52")
        self.final_addrs()
        A(f"v_lshrrev_b32 v56, 1, v54\nv_lshlrev_b32 v56, 6, v56\nv_lshl_add_u32 v56, v52, 4, v56\nv_and_b32 v57, 1, v54\nv_lshl_add_u32 v56, v57, 3, v56\nv_lshl_add_u32 v56, v53, 1, v56")
        A(f"v_and_b32 v57, 1, v53\nv_cmp_eq_u32 vcc, 0, v57\nv_mov_b32 v61, s{sHUGE}\nv_cndmask_b32 v56, v61, v56, vcc")
        self.stats_addr(59)
        A(f"v_mov_b32 v52, v63\ns_sub_u32 s65, s{sR}, 20\ns_lshl_b32 s65, s65, 7\ns_add_u32 s65, s65, s{sLOC}\ns_add_u32 s65, s65, {LOC_H}")
        A(f"s_cmp_eq_u32 s{sL}, 0\ns_cbranch_scc0 L_gu1")
        for r in range(28, 32): A(f"v_mov_b32 v{r}, 0x3f803f80")
        A("s_waitcnt lgkmcnt(0)")
        for i in range(5): A(f"v_mfma_f32_16x16x32_bf16 v[48:51], v[{8+4*i}:{11+4*i}], v[28:31], {'0' if i == 0 else 'v[48:51]'}")
        self.part_write(off=2048)
        A("s_waitcnt lgkmcnt(0)\ns_barrier")
        A("ds_read_b128 v[28:31], v55 offset:2048\nds_read_b128 v[32:35], v55 offset:2304\ns_waitcnt lgkmcnt(0)")
        self.red4([28, 32])
        A(f"v_mov_b32 v{vCSG}, v28\nv_mov_b32 v{vCSU}, v32")
        A("L_gu1:")
        self.gemv5(66, sleep=1)
        self.part_write()
        A(f"s_cmp_eq_u32 s{sW}, 0\ns_cbranch_scc0 L_gu_rest")
        self.light_stats_loads(67)
        A("s_waitcnt lgkmcnt(0)\ns_barrier")
        self.final_with_stats(67)
        A(f"v_fma_f32 v8, -v{vMU}, v{vCSG}, v8\nv_fma_f32 v12, -v{vMU}, v{vCSU}, v12\nv_mul_f32 v8, v8, v{vRS}\nv_mul_f32 v12, v12, v{vRS}")
        A(f"v_mul_f32 v9, {hex(f2u(-math.log2(math.e)))}, v8\nv_exp_f32 v9, v9\nv_mul_f32 v8, v8, v12\nv_add_f32 v9, 1.0, v9\nv_rcp_f32 v9, v9\nv_mul_f32 v8, v8, v9")
        A("v_mov_b32_dpp v9, v8 row_shl:4 row_mask:0xf bank_mask:0x5\nv_cvt_pk_bf16_f32 v8, v8, v9")
        self.mode_store([f"buffer_store_dword v8, v56, {WS}, s65 offen"])
        self.stamp("x1_pub")
        A("s_branch L_gu_done\nL_gu_rest:\ns_waitcnt lgkmcnt(0)\ns_barrier\nL_gu_done:")
        A(f"s_cmp_eq_u32 s{sL}, 0\ns_cbranch_scc0 L_fin")
        A(f"s_mul_i32 s68, s{sW}, 5120\ns_add_u32 s68, s68, {L_WQ}\nv_add_u32 v55, s68, v{vTR}")
        self.tr_reads(8, 55, 5, 32)
        A("L_q2:")
        if self.stamps:
            A("s_waitcnt lgkmcnt(0)")
            for k in range(13): A(f"s_mov_b32 s{32+k}, s{76+2*k}")
        A(f"s_mul_i32 s66, s{sKQ}, 1280\ns_add_u32 s66, s66, s{sLOC}\ns_add_u32 s66, s66, {LOC_X2}\ns_add_u32 s67, s{sLOC}, {LOC_ST2}")
        A(f"s_mov_b32 s{sL}, 1\ns_add_u32 s{sLOC}, s{sLOC}, {LSTR}\ns_add_u32 s{sG1}, s{sG1}, {G_L}")
        A(f"s_cmp_eq_u32 s{sW}, 0\ns_cbranch_scc0 L_q2a")
        self.final_addrs(); self.q_store_addrs()
        A(f"v_mov_b32 v61, s{sHUGE}"); self.stats_addr(59)
        A(f"v_lshlrev_b32 v52, 2, v0\nds_read_b32 v{vCQ0}, v52 offset:{L_CS}\nds_read_b32 v{vCQ1}, v52 offset:{L_CS+256}")
        A("L_q2a:")
        self.part_addr()
        self.gemv5(66)
        self.part_write()
        A(f"s_cmp_eq_u32 s{sW}, 0\ns_cbranch_scc0 L_q2_rest")
        self.light_stats_loads(67)
        A("s_waitcnt lgkmcnt(0)\ns_barrier")
        self.final_with_stats(67)
        self.q_final_tail()
        self.stamp("q2_pub")
        A("s_branch L_q2_done\nL_q2_rest:\ns_waitcnt lgkmcnt(0)\ns_barrier\nL_q2_done:")
        self.bq_addrs()
        A(f"s_mul_i32 s70, s{sHH}, 1536\ns_mul_i32 s71, s{sB}, 384\ns_add_u32 s70, s70, s71\ns_add_u32 s70, s70, s{sLOC}")
        h = self.poll_begin()
        for k in range(3): A(f"buffer_load_dwordx4 v[{8+4*k}:{11+4*k}], v{20+k}, {WS}, s70 offen sc1")
        A("s_waitcnt vmcnt(0)")
        for x in self.sentinel_check(list(range(8, 20)), 23): A(x)
        self.poll_end(h)
        A("s_branch L_att")
        A("L_fin:")
        if self.stamps:
            self.stnames.append("end"); k = len(self.stnames) - 1
            A(f"s_waitcnt vmcnt(0)\ns_memrealtime s[{76+2*k}:{77+2*k}]\ns_waitcnt lgkmcnt(0)")
            A(f"s_lshl_b32 s62, s2, 3\ns_add_u32 s62, s62, s{sW}\ns_lshl_b32 s62, s62, 7\ns_add_u32 s62, s62, {STAMPS}")
            A(f"s_add_u32 s62, s{pWS}, s62\ns_addc_u32 s63, s{pWS+1}, 0\nv_mov_b32 v8, 0\ns_mov_b64 exec, 1")
            for i in range(k + 1): A(f"v_mov_b32 v9, s{76+2*i}\nglobal_store_dword v8, v9, s[62:63] offset:{4*i}")
            A(f"v_mov_b32 v9, s{sMODE}\nglobal_store_dword v8, v9, s[62:63] offset:60")
            for i in range(13): A(f"v_mov_b32 v9, s{32+i}\nglobal_store_dword v8, v9, s[62:63] offset:{64+4*i}")
        A(f"{L_END}:\ns_endpgm")
        for x in self.far: A(x)
        A("L_codeend:")
        body = A.finish(verbose=False)
        return wrap(body, 256, 512, LDS_BYTES, 256, 64)

if __name__ == "__main__":
    import json
    out = sys.argv[1] if len(sys.argv) > 1 else "k.s"
    g = Gen(stamps="stamps" in sys.argv, force_slow="slow" in sys.argv)
    s = g.build()
    open(out, "w").write(s)
    json.dump(g.stnames, open(out[:-2] + ".json", "w"))
    build(out)
    print(out, len(s.splitlines()), "lines")
```

```python
import sys, math, struct
sys.path.insert(0, "bench"); sys.path.insert(0, "gen")
from asmlib import Asm
from common import wrap, build, KNAME

def f2u(x): return struct.unpack("<I", struct.pack("<f", x))[0]

LOC_Q, LOC_O5, LOC_LSE, LOC_X1, LOC_ST1, LOC_H, LOC_X2, LOC_ST2 = 0, 6144, 18432, 18560, 23680, 24960, 26496, 31616
LSTR, XBLK = 33280, 66560
GBASE, G_L, G3 = 8 * 66560, 163840, 81920
AREA = 1 << 20
STAMPS = 2 << 20
L_ML, L_QB, L_CNT, L_CS = 0, 64, 512, 576
L_PQ = 1280
L_PO = L_PQ + 4096
L_PA = L_PO + 4096
PA_STR = 1664
L_WQ = L_PA + 8 * PA_STR
L_W2 = L_WQ + 40960
LDS_BYTES = L_W2 + 61440
HUGE = 0x80000000
sW, sX, sR, sHH, sJ, sL, sMODE, sBUD, sC = 3, 4, 5, 6, 7, 8, 9, 10, 11
WS, SA, SK, SV, SX = "s[12:15]", "s[16:19]", "s[20:23]", "s[24:27]", "s[28:31]"
pAX, pK, pV, pWQ, pWO, pWR, pG, pU, pD, pOUT, pDBG, pWS = 32, 34, 36, 38, 40, 44, 46, 48, 50, 52, 54, 56
sLOC, sG1, sT, sKQ, sB, sSC, sHUGE = 58, 59, 60, 61, 72, 73, 74
vACT, vTR, vXP, vWR, vMU, vRS, vSG = 1, 2, 3, 4, 5, 6, 7
vCSG, vCSU = vXP, vWR
vCQ0, vCQ1 = 62, 63

M_C4 = 0x000F000F000F000F

class Gen:
    def __init__(self, stamps=False, force_slow=False, dbgout=False, kvfl=' nt'):
        self.A = Asm(); self.far = []; self.n = 0
        self.stamps = stamps; self.nst = 0; self.stnames = []; self.force_slow = force_slow; self.dbgout = dbgout; self.kvfl = kvfl
    def lab(self, p): self.n += 1; return f"L_{p}{self.n}"
    def stamp(self, name):
        if not self.stamps: return
        if name not in self.stnames: self.stnames.append(name)
        k = self.stnames.index(name)
        assert k < 13
        self.A(f"s_memrealtime s[{76+2*k}:{77+2*k}]")
    def srd(self, S, ptr, size, off=None):
        A = self.A; b = int(S[2:S.index(':')])
        if off is None: A(f"s_mov_b32 s{b}, s{ptr}\ns_mov_b32 s{b+1}, s{ptr+1}")
        else: A(f"s_add_u32 s{b}, s{ptr}, s{off}\ns_addc_u32 s{b+1}, s{ptr+1}, 0")
        A(f"s_mov_b32 s{b+2}, {size}\ns_mov_b32 s{b+3}, 0x20000")
    def exec(self, mask):
        if mask == -1: self.A("s_mov_b64 exec, -1")
        elif mask < 65: self.A(f"s_mov_b64 exec, {mask}")
        else: self.A(f"s_mov_b32 exec_lo, {hex(mask & 0xffffffff)}\ns_mov_b32 exec_hi, {hex(mask >> 32)}")
    def poll_begin(self, sleep=0):
        r, p, ok, g = self.lab("retry"), self.lab("poll"), self.lab("ok"), self.lab("give")
        self.A(f"{r}:\ns_sub_u32 s{sBUD}, s{sBUD}, 1\ns_cbranch_scc1 {g}")
        if sleep: self.A(f"s_sleep {sleep}")
        self.far.append(f"{g}:\ns_mov_b32 s{sBUD}, 0\ns_branch {ok}")
        return r, ok
    def poll_end(self, h, cond="s_cbranch_vccnz"):
        self.A(f"{cond} {h[0]}\n{h[1]}:")
    def sentinel_check(self, regs, tmp):
        o = [f"v_max3_u32 v{tmp}, v{regs[0]}, v{regs[1]}, v{regs[2]}"] if len(regs) >= 3 else [f"v_max_u32 v{tmp}, v{regs[0]}, v{regs[-1]}"]
        rest = regs[3:]
        while len(rest) >= 2:
            o.append(f"v_max3_u32 v{tmp}, v{tmp}, v{rest[0]}, v{rest[1]}"); rest = rest[2:]
        if rest: o.append(f"v_max_u32 v{tmp}, v{tmp}, v{rest[0]}")
        o.append(f"v_cmp_eq_u32 vcc, -1, v{tmp}")
        return o
    def mode_store(self, stores):
        s, b = self.lab("slow"), self.lab("back")
        self.A(f"s_cmp_eq_u32 s{sMODE}, 0\ns_cbranch_scc1 {s}")
        for x in stores: self.A(x)
        self.A(f"{b}:")
        self.far.append(f"{s}:\n" + "\n".join(x + " sc1" for x in stores) + f"\ns_branch {b}")
    def interleave(self, a, b, lead=0):
        out = []; nb = len(b); na = len(a); j = 0
        for i, x in enumerate(a):
            out.append(x)
            if i >= lead:
                want = (i - lead + 1) * nb // max(1, na - lead)
                while j < want: out.append(b[j]); j += 1
        out += b[j:]
        for x in out: self.A(x)
    def red4(self, groups):
        A = self.A
        for (src, dst, bm) in ((0, 0, "0x3"), (1, 1, "0x3"), (2, 0, "0xc"), (3, 1, "0xc")):
            for g in groups: A(f"v_add_f32_dpp v{g+dst}, v{g+src}, v{g+src} row_ror:8 row_mask:0xf bank_mask:{bm}")
        for g in groups: A(f"v_add_f32_dpp v{g}, v{g}, v{g} row_shl:4 row_mask:0xf bank_mask:0x5")
        for g in groups: A(f"v_add_f32_dpp v{g}, v{g+1}, v{g+1} row_shr:4 row_mask:0xf bank_mask:0xa")
    def tr_reads(self, dst, vaddr, nsteps, rs, extra=0):
        for i in range(nsteps):
            for u in range(2):
                self.A(f"ds_read_b64_tr_b16 v[{dst+4*i+2*u}:{dst+4*i+2*u+1}], v{vaddr} offset:{(32*i+4*u)*rs+extra}")
    def dma(self, srd, voff, soff, step, m0, npieces):
        A = self.A
        for p in range(npieces):
            A(f"s_mov_b32 m0, s{m0}")
            A(f"s_add_u32 s{m0}, s{m0}, 1024")
            A(f"buffer_load_dwordx4 v{voff}, {srd}, s{soff} offen nt lds")
            A(f"s_add_u32 s{soff}, s{soff}, {step}")
    def kv_loads(self, which):
        srd, vo, base = (SK, 60, 0) if which == 0 else (SV, 61, 96)
        for t in range(8):
            for tau in range(3):
                so = "0" if t < 2 else f"s{62 + t//2}"
                r = base + 12*t + 4*tau
                self.A(f"buffer_load_dwordx4 a[{r}:{r+3}], v{vo}, {srd}, {so} offen offset:{(t&1)*3072+tau*256}{self.kvfl}")
    def stats_finish(self, s1, s2, t):
        return [f"v_mul_f32 v{vMU}, {hex(f2u(1/640))}, v{s1}",
                f"v_mul_f32 v{t}, v{vMU}, v{vMU}",
                f"v_mul_f32 v{s2}, {hex(f2u(1/640))}, v{s2}",
                f"v_sub_f32 v{t}, v{s2}, v{t}",
                f"v_max_f32 v{t}, 0, v{t}",
                f"v_add_f32 v{t}, {hex(f2u(1e-5))}, v{t}",
                f"v_rsq_f32 v{vRS}, v{t}"]
    def row_allreduce(self, regs):
        o = []
        for sh in (8, 4, 2, 1):
            for r in regs: o.append(f"v_add_f32_dpp v{r}, v{r}, v{r} row_ror:{sh} row_mask:0xf bank_mask:0xf")
        return o
    def stats_addr(self, v):
        A = self.A
        A(f"v_and_b32 v{v}, 15, v0\nv_lshrrev_b32 v{v+1}, 4, v0\nv_cmp_gt_u32 vcc, 4, v{v}")
        A(f"v_lshlrev_b32 v{v}, 6, v{v}\nv_lshl_add_u32 v{v}, v{v+1}, 4, v{v}\nv_add_u32 v{v+1}, 1024, v{v}")
        A(f"v_cndmask_b32 v{v+1}, v{v+2}, v{v+1}, vcc")
    def publish_x(self, soff_x, soff_st):
        A = self.A
        self.mode_store([f"buffer_store_dword v{vXP}, v56, {WS}, s{soff_x} offen"])
        A(f"v_mov_b32 v48, 0x3f803f80")
        for r in range(44, 48): A(f"v_mov_b32 v{r}, 0")
        A(f"v_dot2_f32_bf16 v44, v{vXP}, v48, v44\nv_dot2_f32_bf16 v45, v{vXP}, v{vXP}, v45")
        A(f"v_dot2_f32_bf16 v46, v{vXP}, v{vWR}, v46\nv_dot2_f32_bf16 v47, v48, v{vWR}, v47")
        self.red4([44])
        A("v_add_f32_dpp v44, v44, v44 quad_perm:[1,0,3,2] row_mask:0xf bank_mask:0xf")
        A("v_add_f32_dpp v44, v44, v44 quad_perm:[2,3,0,1] row_mask:0xf bank_mask:0xf")
        self.mode_store([f"buffer_store_dword v44, v57, {WS}, s{soff_st} offen"])
    def gather8(self, soff):
        A = self.A
        h = self.poll_begin()
        for k in range(4): A(f"buffer_load_dwordx4 v[{28+4*k}:{31+4*k}], v58, {WS}, s{soff} offen offset:{k*512} sc1")
        A("s_waitcnt vmcnt(0)")
        chk = self.sentinel_check(list(range(28, 44)), 52)
        for x in chk[:-1]: A(x)
        A("v_pk_add_f32 v[48:49], v[28:29], v[32:33]\nv_pk_add_f32 v[50:51], v[30:31], v[34:35]")
        A("v_pk_add_f32 v[44:45], v[36:37], v[40:41]\nv_pk_add_f32 v[46:47], v[38:39], v[42:43]")
        A(chk[-1])
        A("v_pk_add_f32 v[48:49], v[48:49], v[44:45]\nv_pk_add_f32 v[50:51], v[50:51], v[46:47]")
        self.poll_end(h)
        for (src, dst, bm) in ((48, 28, "0x3"), (49, 29, "0x3"), (50, 28, "0xc"), (51, 29, "0xc")):
            A(f"v_add_f32_dpp v{dst}, v{src}, v{src} row_ror:8 row_mask:0xf bank_mask:{bm}")
    def owner_addrs(self):
        A = self.A
        A("v_lshrrev_b32 v52, 4, v0\nv_bfe_u32 v53, v0, 3, 1\nv_and_b32 v54, 7, v0")
        A("v_lshrrev_b32 v56, 1, v54\nv_lshlrev_b32 v56, 6, v56\nv_lshl_add_u32 v56, v52, 4, v56")
        A("v_and_b32 v55, 1, v54\nv_lshl_add_u32 v56, v55, 3, v56\nv_lshl_add_u32 v56, v53, 2, v56")
        A("v_lshlrev_b32 v58, 7, v52\nv_lshl_add_u32 v58, v54, 4, v58\nv_lshl_add_u32 v58, v53, 11, v58")
        A("v_mul_u32_u24 v59, 1280, v52\nv_lshl_add_u32 v59, v54, 3, v59\nv_lshl_add_u32 v59, v53, 2, v59")
        A(f"v_bfe_u32 v57, v0, 2, 2\nv_lshlrev_b32 v57, 2, v57\nv_lshl_add_u32 v57, v52, 4, v57")
        A(f"v_and_b32 v55, 3, v0\nv_cmp_eq_u32 vcc, 0, v55\nv_mov_b32 v55, s{sHUGE}\nv_cndmask_b32 v57, v55, v57, vcc")
    def final_addrs(self):
        A = self.A
        A("v_lshrrev_b32 v52, 4, v0\nv_bfe_u32 v53, v0, 2, 2\nv_and_b32 v54, 3, v0")
        A(f"v_lshlrev_b32 v55, 9, v53\nv_lshl_add_u32 v55, v52, 6, v55\nv_lshl_add_u32 v55, v54, 4, v55\nv_add_u32 v55, {L_PQ}, v55")
    def q_store_addrs(self):
        A = self.A
        A("v_mul_u32_u24 v56, 384, v52\nv_lshl_add_u32 v56, v54, 3, v56\nv_lshl_add_u32 v56, v53, 1, v56")
        A(f"v_and_b32 v58, 1, v53\nv_cmp_eq_u32 vcc, 0, v58\nv_mov_b32 v58, s{sHUGE}\nv_cndmask_b32 v56, v58, v56, vcc")
        A("v_cmp_gt_u32 vcc, 2, v54\nv_add_u32 v57, 32, v56\nv_cndmask_b32 v57, v58, v57, vcc")
        A(f"s_mul_i32 s70, s{sHH}, 1536\ns_mul_i32 s71, s{sJ}, 48\ns_add_u32 s70, s70, s71\ns_add_u32 s70, s70, s{sLOC}")
    def q_final_tail(self):
        A = self.A
        A(f"v_fma_f32 v8, -v{vMU}, v{vCQ0}, v8\nv_fma_f32 v12, -v{vMU}, v{vCQ1}, v12")
        A(f"v_mul_f32 v8, v8, v{vRS}\nv_mul_f32 v12, v12, v{vRS}")
        A("v_mov_b32_dpp v9, v8 row_shl:4 row_mask:0xf bank_mask:0x5\nv_mov_b32_dpp v13, v12 row_shl:4 row_mask:0xf bank_mask:0x5")
        A("v_cvt_pk_bf16_f32 v8, v8, v9\nv_cvt_pk_bf16_f32 v12, v12, v13")
        self.mode_store([f"buffer_store_dword v8, v56, {WS}, s70 offen", f"buffer_store_dword v12, v57, {WS}, s70 offen"])
    def bq_addrs(self):
        A = self.A
        A("v_lshrrev_b32 v23, 4, v0\nv_and_b32 v24, 3, v0\nv_lshl_add_u32 v24, v23, 2, v24\nv_lshlrev_b32 v24, 4, v24")
        A(f"v_bfe_u32 v25, v0, 3, 1\nv_mov_b32 v26, s{sHUGE}\nv_cmp_eq_u32 vcc, 0, v25")
        A("v_add_u32 v22, 128, v24\nv_cndmask_b32 v20, v26, v24, vcc\nv_cndmask_b32 v22, v22, v26, vcc")
        A("v_mul_u32_u24 v27, 384, v25\nv_add_u32 v21, 256, v24\nv_sub_u32 v21, v21, v27")
        A("v_lshrrev_b32 v23, 1, v23\nv_cmp_eq_u32 vcc, v23, v25\nv_cndmask_b32 v21, v26, v21, vcc")
        A("v_and_b32 v23, 1, v0\nv_lshlrev_b32 v23, 4, v23\nv_mov_b32 v24, 0xffff\nv_lshlrev_b32 v24, v23, v24\nv_bfe_u32 v23, v0, 1, 2")
        for r in range(4): A(f"v_cmp_eq_u32 vcc, {r}, v23\nv_cndmask_b32 v{52+r}, 0, v24, vcc")
    def gemv5(self, soff, sleep=0):
        A = self.A
        h = self.poll_begin(sleep)
        for i in range(5): A(f"buffer_load_dwordx4 v[{28+4*i}:{31+4*i}], v{vACT}, {WS}, s{soff} offen offset:{i*256} sc1")
        A("s_waitcnt vmcnt(0) lgkmcnt(0)")
        m = [f"v_mfma_f32_16x16x32_bf16 v[48:51], v[{8+4*i}:{11+4*i}], v[{28+4*i}:{31+4*i}], {'0' if i == 0 else 'v[48:51]'}" for i in range(5)]
        self.interleave(m, self.sentinel_check(list(range(28, 48)), 53))
        self.poll_end(h)
    def part_write(self, regs="v[48:51]", off=0):
        self.exec(M_C4); self.A(f"ds_write_b128 v52, {regs} offset:{off}"); self.exec(-1)
    def part_addr(self):
        self.A(f"v_and_b32 v52, 15, v0\nv_lshlrev_b32 v52, 6, v52\nv_lshrrev_b32 v53, 4, v0\nv_lshl_add_u32 v52, v53, 4, v52")
        self.A(f"s_lshl_b32 s62, s{sW}, 8\ns_add_u32 s62, s62, {L_PQ}\nv_add_u32 v52, s62, v52")
    def light_stats_loads(self, soff):
        A = self.A
        A(f"buffer_load_dwordx2 v[16:17], v59, {WS}, s{soff} offen sc1\nbuffer_load_dwordx2 v[18:19], v60, {WS}, s{soff} offen sc1")
    def final_with_stats(self, soff):
        A = self.A
        A("ds_read_b128 v[8:11], v55\nds_read_b128 v[12:15], v55 offset:256")
        again, ok = self.lab("stre"), self.lab("stok")
        A("s_waitcnt vmcnt(0)")
        for x in self.sentinel_check([16, 17, 18, 19], 20): A(x)
        A(f"s_cbranch_vccnz {again}\n{ok}:")
        g = self.lab("give")
        self.far.append(f"{again}:\ns_sub_u32 s{sBUD}, s{sBUD}, 1\ns_cbranch_scc1 {g}\n"
                        f"buffer_load_dwordx2 v[16:17], v59, {WS}, s{soff} offen sc1\nbuffer_load_dwordx2 v[18:19], v60, {WS}, s{soff} offen sc1\n"
                        "s_waitcnt vmcnt(0)\n" + "\n".join(self.sentinel_check([16, 17, 18, 19], 20)) +
                        f"\ns_cbranch_vccnz {again}\ns_branch {ok}\n{g}:\ns_mov_b32 s{sBUD}, 0\ns_branch {ok}")
        A("v_pk_add_f32 v[16:17], v[16:17], v[18:19]")
        ar = self.row_allreduce([16, 17])
        for x in ar[:4]: A(x)
        A("s_waitcnt lgkmcnt(0)")
        red = Asm(); save = self.A; self.A = red; self.red4([8, 12]); self.A = save
        rest = ar[4:] + self.stats_finish(16, 17, 18)
        self.interleave(red.lines, rest)

    def build(self):
        A = self.A
        L_END = "L_end"
        self.stamp("start")
        A(f"s_cmp_ge_u32 s2, 256\ns_cbranch_scc1 {L_END}")
        A("s_load_dwordx16 s[32:47], s[0:1], 0\ns_load_dwordx8 s[48:55], s[0:1], 64\ns_load_dwordx2 s[56:57], s[0:1], 96")
        A(f"v_lshrrev_b32 v1, 6, v0\nv_and_b32 v0, 63, v0\nv_readfirstlane_b32 s{sW}, v1")
        A(f"s_and_b32 s{sX}, s2, 7\ns_lshr_b32 s{sR}, s2, 3\ns_lshr_b32 s{sHH}, s{sR}, 3\ns_and_b32 s{sJ}, s{sR}, 7")
        A(f"s_sub_u32 s{sW}, 7, s{sW}")
        A(f"s_lshr_b32 s{sB}, s{sJ}, 1\ns_and_b32 s62, s{sJ}, 1\ns_lshl_b32 s{sC}, s62, 2\ns_add_u32 s{sC}, s{sC}, s{sB}")
        A(f"s_and_b32 s{sT}, s{sW}, 1\ns_lshr_b32 s{sKQ}, s{sW}, 1")
        A(f"s_lshl_b32 s63, s{sB}, 5\ns_lshl_b32 s64, s{sX}, 2\ns_add_u32 s63, s63, s64\ns_add_u32 s63, s63, s{sHH}")
        A(f"s_mul_i32 s63, s63, 1572864\ns_lshl_b32 s62, s62, 3\ns_add_u32 s62, s62, s{sW}\ns_mul_i32 s62, s62, 24576")
        A(f"s_add_u32 s66, s63, s62\ns_add_u32 s66, s66, {3072*384}")
        A(f"s_mov_b32 s63, 6144\ns_mov_b32 s64, 12288\ns_mov_b32 s65, 18432")
        A(f"s_mov_b32 s{sHUGE}, {hex(HUGE)}\ns_mov_b32 s{sBUD}, 0x100000\ns_mov_b32 s{sL}, 0\ns_mov_b32 s{sMODE}, 0")
        A(f"s_mov_b32 s{sSC}, {hex(f2u(192 ** -0.5 * math.log2(math.e)))}")
        A(f"s_mul_i32 s{sLOC}, s{sX}, {XBLK}\ns_lshl_b32 s{sG1}, s{sR}, 12\ns_add_u32 s{sG1}, s{sG1}, {GBASE}")
        A("v_lshrrev_b32 v8, 4, v0\nv_and_b32 v9, 15, v0\nv_and_b32 v10, 3, v0\nv_bfe_u32 v11, v0, 2, 2")
        A("v_mul_u32_u24 v60, 768, v11\nv_lshl_add_u32 v12, v8, 2, v10\nv_lshl_add_u32 v60, v12, 4, v60")
        A("v_mul_u32_u24 v61, 768, v8\nv_lshl_add_u32 v61, v9, 4, v61")
        A(f"v_lshl_add_u32 v{vTR}, v8, 3, v11\nv_lshlrev_b32 v{vTR}, 5, v{vTR}\nv_lshl_add_u32 v{vTR}, v10, 3, v{vTR}")
        A(f"v_mov_b32 v13, s{sHUGE}\nv_cmp_gt_u32 vcc, 4, v9")
        A(f"v_lshlrev_b32 v{vACT}, 6, v8\nv_lshl_add_u32 v{vACT}, v9, 4, v{vACT}\nv_cndmask_b32 v{vACT}, v13, v{vACT}, vcc")
        A("v_mul_u32_u24 v59, 1280, v9\nv_lshl_add_u32 v59, v8, 4, v59\nv_cndmask_b32 v59, v13, v59, vcc")
        A(f"v_lshrrev_b32 v58, 1, v0\nv_mul_u32_u24 v58, 12288, v58\nv_and_b32 v14, 1, v0\nv_lshl_add_u32 v58, v14, 4, v58")
        A(f"v_and_b32 v14, s{sT}, v14\nv_cmp_eq_u32 vcc, 0, v14\nv_cndmask_b32 v58, v13, v58, vcc")
        A(f"v_mov_b32 v14, {L_CNT}\nv_mov_b32 v16, 0\nv_mov_b32 v17, 0")
        self.exec(1); A("ds_write_b64 v14, v[16:17]"); self.exec(-1)
        A(f"s_mul_i32 s67, s{sKQ}, {160*12288}\ns_mul_i32 s68, s{sX}, 1536\ns_add_u32 s67, s67, s68\ns_mul_i32 s68, s{sR}, 48")
        A(f"s_add_u32 s67, s67, s68\ns_lshl_b32 s68, s{sT}, 5\ns_add_u32 s67, s67, s68")
        A(f"s_mul_i32 s68, s{sW}, 5120\ns_add_u32 s68, s68, {L_WQ}\nv_add_u32 v54, s68, v{vTR}")
        A(f"s_mul_i32 s69, s{sKQ}, 320")
        A("s_waitcnt lgkmcnt(0)\ns_barrier")
        self.srd(SA, pWQ, 7864320); self.srd(SX, pAX, 5120)
        self.srd(SK, pK, 24576, 66); self.srd(SV, pV, 24576, 66); self.srd(WS, pWS, AREA)
        A(f"s_cmp_ge_u32 s{sW}, 4\ns_cbranch_scc1 L_old0\ns_setprio 3")
        A(f"s_cmp_eq_u32 s{sW}, 0\ns_cbranch_scc0 L_first")
        A("v_mov_b32 v16, -1\nv_mov_b32 v17, -1\nv_mov_b32 v18, -1\nv_mov_b32 v19, -1\nv_lshlrev_b32 v14, 4, v0\ns_lshl_b32 s70, s2, 12")
        for k in range(4): A(f"buffer_store_dwordx4 v[16:19], v14, {WS}, s70 offen offset:{k*1024} sc1")
        A("s_branch L_first")
        A("L_old0:\ns_setprio 2")
        A("L_first:")
        self.dma(SA, 58, 67, 32*12288, 68, 5)
        for i in range(5): A(f"buffer_load_dwordx4 v[{28+4*i}:{31+4*i}], v59, {SX}, s69 offen offset:{i*64}")
        A(f"s_cmp_ge_u32 s{sW}, 4\ns_cbranch_scc0 L_young1")
        self.kv_loads(0)
        A("s_waitcnt vmcnt(24)\ns_branch L_qpart\nL_young1:\ns_waitcnt vmcnt(0)\nL_qpart:")
        self.tr_reads(8, 54, 5, 32)
        self.part_addr()
        for r in range(56, 60): A(f"v_mov_b32 v{r}, 0x3f803f80")
        A("s_waitcnt lgkmcnt(0)")
        for i in range(5):
            A(f"v_mfma_f32_16x16x32_bf16 v[48:51], v[{8+4*i}:{11+4*i}], v[{28+4*i}:{31+4*i}], {'0' if i == 0 else 'v[48:51]'}")
        for i in range(5):
            A(f"v_mfma_f32_16x16x32_bf16 v[28:31], v[{8+4*i}:{11+4*i}], v[56:59], {'0' if i == 0 else 'v[28:31]'}")
        self.exec(M_C4); A("ds_write_b128 v52, v[48:51]\nds_write_b128 v52, v[28:31] offset:2048")
        self.exec(1); A(f"v_mov_b32 v8, {L_CNT}\nv_mov_b32 v9, 1\ns_waitcnt lgkmcnt(0)\nds_add_u32 v8, v9"); self.exec(-1)
        A(f"s_cmp_ge_u32 s{sW}, 4\ns_cbranch_scc1 L_vload\ns_cmp_eq_u32 s{sW}, 0\ns_cbranch_scc0 L_kload2")
        self.stamp("c_qpart")
        A("s_getreg_b32 s67, hwreg(HW_REG_XCC_ID, 0, 4)\ns_mul_i32 s68, s67, s67\ns_lshl_b32 s68, s68, 15\ns_lshl_b32 s67, s67, 6")
        A("s_add_u32 s67, s67, s68\ns_add_u32 s67, s67, 1")
        A(f"s_and_b32 s68, s{sX}, 1\ns_lshl_b32 s68, s68, 7\ns_lshr_b32 s69, s{sX}, 1\ns_lshl_b32 s69, s69, 2\ns_add_u32 s68, s68, s69")
        A("v_mov_b32 v8, s68\nv_mov_b32 v9, s67")
        self.exec(1); A(f"global_atomic_add v8, v9, s[{pDBG}:{pDBG+1}]"); self.exec(-1)
        A("v_lshrrev_b32 v10, 4, v0\nv_and_b32 v11, 15, v0\nv_mul_u32_u24 v10, 1280, v10\nv_lshl_add_u32 v10, v11, 4, v10")
        for k in range(5): A(f"buffer_load_dwordx4 v[{28+4*k}:{31+4*k}], v10, {SX}, 0 offen offset:{k*256}")
        self.owner_addrs()
        A(f"s_lshl_b32 s70, s{sR}, 6")
        A(f"buffer_load_dword v{vXP}, v59, {SX}, s70 offen")
        self.srd(SA, pWR, 1280)
        A("v_and_b32 v11, 7, v0\nv_bfe_u32 v12, v0, 3, 1\nv_lshlrev_b32 v11, 3, v11\nv_lshl_add_u32 v11, v12, 2, v11")
        A(f"buffer_load_dword v{vWR}, v11, {SA}, s70 offen")
        A(f"s_getpc_b64 s[70:71]\nL_pc:\ns_sub_u32 s70, s70, L_pc-{KNAME}\ns_subb_u32 s71, s71, 0")
        A(f"s_lshl_b32 s69, s{sR}, 10\nv_lshl_add_u32 v11, v0, 4, s69\nv_min_u32 v11, L_codeend-{KNAME}-16, v11")
        A("global_load_dwordx4 v[12:15], v11, s[70:71]")
        A("v_mov_b32 v16, 0\nv_mov_b32 v17, 0\nv_mov_b32 v18, 0x3f803f80\ns_waitcnt vmcnt(3)")
        for r in range(28, 48): A(f"v_dot2_f32_bf16 v16, v{r}, v18, v16\nv_dot2_f32_bf16 v17, v{r}, v{r}, v17")
        for x in self.row_allreduce([16, 17]) + self.stats_finish(16, 17, 18): A(x)
        A("v_and_b32 v10, 1, v0\nv_lshlrev_b32 v10, 7, v10\nv_bfe_u32 v11, v0, 1, 2\nv_lshl_add_u32 v10, v11, 2, v10")
        h = self.poll_begin(sleep=4)
        A(f"global_load_dword v11, v10, s[{pDBG}:{pDBG+1}] sc1\ns_waitcnt vmcnt(0)\nv_and_b32 v12, 63, v11\nv_cmp_ne_u32 vcc, 32, v12")
        self.poll_end(h)
        A(f"v_readlane_b32 s68, v11, s{sX}\ns_lshl_b32 s67, s67, 5\ns_cmp_eq_u32 s68, s67\ns_cselect_b32 s{sMODE}, 1, 0")
        if self.force_slow: A(f"s_mov_b32 s{sMODE}, 0")
        self.stamp("c_flags")
        A(f"s_mul_i32 s68, s{sR}, 2112\ns_add_u32 s68, s68, s{sLOC}\nv_lshlrev_b32 v10, 6, v0\nv_cmp_gt_u32 vcc, 33, v0")
        A(f"v_mov_b32 v11, s{sHUGE}\nv_cndmask_b32 v10, v11, v10, vcc\nbuffer_load_dword v12, v10, {WS}, s68 offen sc1")
        self.final_addrs(); self.q_store_addrs()
        A(f"v_mov_b32 v20, {L_CNT}")
        h = self.poll_begin(sleep=1)
        A("ds_read_b32 v21, v20\ns_waitcnt lgkmcnt(0)\nv_cmp_ne_u32 vcc, 8, v21")
        self.poll_end(h)
        A("s_waitcnt vmcnt(0)")
        A("ds_read_b128 v[8:11], v55\nds_read_b128 v[12:15], v55 offset:256\nds_read_b128 v[16:19], v55 offset:2048\nds_read_b128 v[20:23], v55 offset:2304")
        A("s_waitcnt lgkmcnt(0)")
        self.red4([8, 12, 16, 20])
        A(f"v_mov_b32 v{vCQ0}, v16\nv_mov_b32 v{vCQ1}, v20\nv_lshlrev_b32 v24, 2, v0")
        A(f"ds_write_b32 v24, v16 offset:{L_CS}\nds_write_b32 v24, v20 offset:{L_CS+256}")
        self.q_final_tail()
        A(f"v_lshlrev_b32 v24, 4, v0\nv_cmp_gt_u32 vcc, 24, v0\nv_mov_b32 v25, s{sHUGE}\nv_cndmask_b32 v25, v25, v24, vcc")
        A(f"s_mul_i32 s70, s{sHH}, 1536\ns_mul_i32 s71, s{sB}, 384\ns_add_u32 s70, s70, s71\ns_add_u32 s70, s70, s{sLOC}")
        h = self.poll_begin()
        A(f"buffer_load_dwordx4 v[8:11], v25, {WS}, s70 offen sc1\ns_waitcnt vmcnt(0)")
        for x in self.sentinel_check([8, 9, 10, 11], 12): A(x)
        self.poll_end(h)
        self.exec((1 << 25) - 1); A(f"ds_write_b128 v24, v[8:11] offset:{L_QB}")
        self.exec(1); A(f"v_mov_b32 v12, {L_CNT}\nv_add_u32 v13, 1, s{sMODE}\ns_waitcnt lgkmcnt(0)\nds_write_b32 v12, v13 offset:4"); self.exec(-1)
        self.stamp("c_q")
        A("L_kload2:\ns_setprio 1")
        self.kv_loads(0)
        A("L_vload:")
        self.kv_loads(1)
        self.bq_addrs()
        A(f"v_mov_b32 v23, {L_CNT}")
        for r in (20, 21, 22): A(f"v_min_u32 v{r}, 384, v{r}")
        h = self.poll_begin(sleep=1)
        A("ds_read_b32 v24, v23 offset:4\ns_waitcnt lgkmcnt(0)\nv_cmp_eq_u32 vcc, 0, v24")
        self.poll_end(h)
        A(f"v_readfirstlane_b32 s{sMODE}, v24")
        for k in range(3): A(f"ds_read_b128 v[{8+4*k}:{11+4*k}], v{20+k} offset:{L_QB}")
        A(f"s_sub_u32 s{sMODE}, s{sMODE}, 1\ns_max_i32 s{sMODE}, s{sMODE}, 0\ns_waitcnt lgkmcnt(0)")
        A("L_att:")
        self.stamp("att0")
        D = lambda t: 20 + 4 * t
        mf = []
        for t in range(8):
            if t % 2 == 0: mf.append(f"s_waitcnt vmcnt({42 - 3*t})")
            for tau in range(3):
                mf.append(f"v_mfma_f32_16x16x32_bf16 v[{D(t)}:{D(t)+3}], a[{12*t+4*tau}:{12*t+4*tau+3}], v[{8+4*tau}:{11+4*tau}], {'0' if tau == 0 else f'v[{D(t)}:{D(t)+3}]'}")
        def ext(ta, tb):
            o = []
            for k in range(4):
                for t in (ta, tb):
                    qp = f"quad_perm:[{k},{k},{k},{k}] row_mask:0xf bank_mask:0xf"
                    o.append(f"v_mov_b32_dpp v{D(t)}, v{D(t)} {qp}" if k == 0 else f"v_add_f32_dpp v{D(t)}, v{D(t)+k}, v{D(t)} {qp}")
            return o
        for x in mf[:14]: A(x)
        def weave(m, e):
            A(m[0]); A(m[1]); A(m[2])
            for k in range(4):
                A(e[2*k]); A(e[2*k+1]); A(m[3+k])
        weave(mf[14:21], ext(0, 1)); weave(mf[21:28], ext(2, 3))
        e45, e67 = ext(4, 5), ext(6, 7)
        A(e45[0]); A(e45[1]); A(f"v_max3_f32 v21, v{D(0)}, v{D(1)}, v{D(2)}"); A(e45[2]); A(e45[3]); A(f"v_max_f32 v21, v21, v{D(3)}")
        A(e45[4]); A(e45[5]); A(e67[0]); A(e67[1]); A(e45[6]); A(e45[7]); A(e67[2]); A(e67[3])
        A(f"v_max3_f32 v21, v21, v{D(4)}, v{D(5)}")
        for x in e67[4:]: A(x)
        A(f"v_max3_f32 v21, v21, v{D(6)}, v{D(7)}")
        A("v_max_f32_dpp v21, v21, v21 row_ror:8 row_mask:0xf bank_mask:0xf")
        A("v_mov_b32 v22, v21\nv_permlane16_swap_b32 v22, v21\nv_max_f32 v21, v21, v22")
        A("v_mov_b32 v22, v21\nv_permlane32_swap_b32 v22, v21\nv_max_f32 v21, v21, v22")
        A(f"v_mul_f32 v22, s{sSC}, v21")
        def pv_pre(t):
            ab = 56 + 4 * (t & 1)
            o = [f"v_fma_f32 v{D(t)}, v{D(t)}, s{sSC}, -v22", f"v_exp_f32 v{D(t)}, v{D(t)}"]
            o2 = [f"v_cvt_pk_bf16_f32 v{D(t)+3}, v{D(t)}, v{D(t)}"] + [f"v_and_b32 v{ab+r}, v{D(t)+3}, v{52+r}" for r in range(4)]
            return o, o2
        def pv_mf(t):
            ab = 56 + 4 * (t & 1)
            return [f"v_mfma_f32_16x16x32_bf16 v[{8+4*tau}:{11+4*tau}], v[{ab}:{ab+3}], a[{96+12*t+4*tau}:{96+12*t+4*tau+3}], {'0' if t == 0 else f'v[{8+4*tau}:{11+4*tau}]'}" for tau in range(3)]
        e0, c0 = pv_pre(0); e1, c1 = pv_pre(1)
        A(e0[0]); A(e1[0]); A(e0[1]); A(e1[1])
        for x in c0: A(x)
        for t in range(8):
            m = pv_mf(t)
            fill = []
            if t + 1 < 8: fill += pv_pre(t + 1)[1]
            if t + 2 < 8: fill = pv_pre(t + 2)[0] + fill
            if t == 1: fill.append(f"v_add_f32 v23, v{D(0)}, v{D(1)}")
            if t >= 2: fill.append(f"v_add_f32 v23, v23, v{D(t)}")
            A(f"s_waitcnt vmcnt({21 - 3*t})")
            A(m[0])
            for x in fill[:3]: A(x)
            A(m[1])
            for x in fill[3:6]: A(x)
            A(m[2])
            for x in fill[6:]: A(x)
        A("v_and_b32 v24, 15, v0\nv_lshlrev_b32 v24, 5, v24\nv_bfe_u32 v25, v0, 4, 1")
        A("v_add_f32_dpp v23, v23, v23 row_ror:8 row_mask:0xf bank_mask:0xf")
        A(f"v_lshl_add_u32 v24, v25, 4, v24\ns_mul_i32 s62, s{sW}, {PA_STR}\ns_add_u32 s62, s62, {L_PA}\nv_add_u32 v24, s62, v24")
        A("v_mov_b32 v26, v23\nv_lshrrev_b32 v25, 5, v0\nv_lshl_add_u32 v25, v25, 10, v24\nv_permlane16_swap_b32 v26, v23\nv_add_f32 v23, v23, v26")
        A(f"v_mov_b32 v26, v23\ns_lshl_b32 s62, s{sW}, 3\nv_mov_b32 v27, s62\nv_permlane32_swap_b32 v26, v23\nv_add_f32 v23, v23, v26")
        A("s_mov_b32 exec_hi, 0\nds_write_b128 v25, v[8:11]\ns_mov_b32 exec_lo, 0\ns_mov_b32 exec_hi, -1\nds_write_b128 v25, v[16:19]")
        self.exec(0xFF00FF0000FF00FF); A("ds_write_b128 v24, v[12:15] offset:512")
        self.exec(1); A(f"ds_write_b64 v27, v[22:23] offset:{L_ML}"); self.exec(-1)
        A(f"s_cmp_eq_u32 s{sL}, 0\ns_cbranch_scc0 L_nolate\ns_cmp_ge_u32 s{sW}, 4\ns_cbranch_scc0 L_nolate\ns_setprio 0")
        A(f"s_cmp_lt_u32 s{sR}, 20\ns_cbranch_scc0 L_late_gu")
        self.srd(SA, pWO, 7864320)
        A("v_lshrrev_b32 v28, 2, v0\nv_mul_u32_u24 v28, 1280, v28\nv_and_b32 v29, 3, v0\nv_lshl_add_u32 v28, v29, 4, v28")
        A(f"s_mul_i32 s66, s{sX}, {768*1280}\ns_lshl_b32 s67, s{sR}, 6\ns_add_u32 s66, s66, s67")
        for dw in (4, 0):
            A(f"s_sub_u32 s69, s{sW}, {dw}\ns_mul_i32 s67, s69, {96*1280}\ns_add_u32 s67, s67, s66\ns_mul_i32 s68, s69, 6144\ns_add_u32 s68, s68, {L_W2}")
            self.dma(SA, 28, 67, 16*1280, 68, 6)
        A("s_branch L_nolate\nL_late_gu:")
        A(f"s_cmp_eq_u32 s{sT}, 0\ns_cselect_b32 s16, s{pG}, s{pU}\ns_cselect_b32 s17, s{pG+1}, s{pU+1}\ns_mov_b32 s18, 1966080\ns_mov_b32 s19, 0x20000")
        A("v_lshrrev_b32 v28, 1, v0\nv_mul_u32_u24 v28, 3072, v28\nv_and_b32 v29, 1, v0\nv_lshl_add_u32 v28, v29, 4, v28")
        A(f"s_mul_i32 s66, s{sX}, 384\ns_sub_u32 s67, s{sR}, 20\ns_lshl_b32 s67, s67, 5\ns_add_u32 s66, s66, s67")
        for dw in (4, 0):
            A(f"s_sub_u32 s69, s{sW}, {dw}\ns_lshr_b32 s67, s69, 1\ns_mul_i32 s67, s67, {160*3072}\ns_add_u32 s67, s67, s66\ns_mul_i32 s68, s69, 5120\ns_add_u32 s68, s68, {L_W2}")
            self.dma(SA, 28, 67, 32*3072, 68, 5)
        A("L_nolate:")
        A(f"v_lshrrev_b32 v28, 3, v0\nv_and_b32 v29, 7, v0\nv_mul_u32_u24 v30, {PA_STR}, v28\nv_lshl_add_u32 v30, v29, 4, v30")
        A(f"s_mul_i32 s62, s{sW}, 96\ns_add_u32 s62, s62, {L_PA}\nv_add_u32 v30, s62, v30\nv_lshlrev_b32 v28, 3, v28")
        A("v_lshrrev_b32 v31, 1, v29\nv_lshlrev_b32 v31, 7, v31\nv_and_b32 v32, 1, v29\nv_lshl_add_u32 v31, v32, 3, v31\nv_lshrrev_b32 v32, 5, v0\nv_lshl_add_u32 v31, v32, 2, v31")
        A(f"v_and_b32 v32, 31, v0\nv_cmp_gt_u32 vcc, 6, v32\nv_mov_b32 v33, s{sHUGE}\nv_cndmask_b32 v31, v33, v31, vcc")
        A(f"v_cmp_eq_u32 vcc, s{sW}, v0\nv_cndmask_b32 v33, v33, v0, vcc\nv_cmp_eq_u32 vcc, 0, v33\nv_mov_b32 v34, s{sHUGE}\nv_cndmask_b32 v33, v34, v33, vcc")
        A(f"s_mul_i32 s62, s{sHH}, 3072\ns_mul_i32 s63, s{sW}, 384\ns_add_u32 s62, s62, s63\ns_lshl_b32 s63, s{sC}, 4\ns_add_u32 s62, s62, s63")
        A(f"s_add_u32 s62, s62, s{sLOC}\ns_add_u32 s62, s62, {LOC_O5}")
        A(f"s_lshl_b32 s63, s{sHH}, 5\ns_lshl_b32 s64, s{sC}, 2\ns_add_u32 s63, s63, s64\ns_add_u32 s63, s63, s{sLOC}\ns_add_u32 s63, s63, {LOC_LSE}")
        self.stamp("att_end")
        A("s_waitcnt lgkmcnt(0)\ns_barrier")
        A(f"ds_read_b64 v[16:17], v28 offset:{L_ML}\nds_read_b128 v[8:11], v30\nds_read_b128 v[12:15], v30 offset:768")
        A("s_waitcnt lgkmcnt(2)")
        A("v_max_f32_dpp v18, v16, v16 row_ror:8 row_mask:0xf bank_mask:0xf")
        A("v_mov_b32 v19, v18\nv_permlane16_swap_b32 v19, v18\nv_max_f32 v18, v18, v19")
        A("v_mov_b32 v19, v18\ns_waitcnt lgkmcnt(0)\nv_pk_add_f32 v[8:9], v[8:9], v[12:13]\nv_permlane32_swap_b32 v19, v18\nv_max_f32 v18, v18, v19")
        A("v_sub_f32 v16, v16, v18\nv_exp_f32 v16, v16\nv_pk_add_f32 v[10:11], v[10:11], v[14:15]\nv_mul_f32 v17, v17, v16")
        A("v_mul_f32 v8, v8, v16\nv_mul_f32 v10, v10, v16")
        A("v_add_f32_dpp v17, v17, v17 row_ror:8 row_mask:0xf bank_mask:0xf")
        A("v_mul_f32 v9, v9, v16\nv_mul_f32 v11, v11, v16\nv_mov_b32 v19, v17")
        A("v_permlane32_swap_b32 v8, v10\nv_permlane32_swap_b32 v9, v11\nv_permlane16_swap_b32 v19, v17")
        A("v_add_f32 v8, v8, v10\nv_add_f32 v9, v9, v11\nv_add_f32 v17, v17, v19\nv_mov_b32 v19, v17")
        A("v_permlane16_swap_b32 v8, v9\nv_permlane32_swap_b32 v19, v17\nv_add_f32 v8, v8, v9\nv_add_f32 v17, v17, v19")
        A("v_rcp_f32 v19, v17\nv_log_f32 v17, v17\nv_add_f32_dpp v8, v8, v8 row_ror:8 row_mask:0xf bank_mask:0xf")
        A("v_mul_f32 v8, v8, v19\nv_add_f32 v17, v17, v18\nv_mov_b32 v9, v8\nv_permlane16_swap_b32 v9, v8\nv_cvt_pk_bf16_f32 v8, v9, v8")
        self.mode_store([f"buffer_store_dword v8, v31, {WS}, s62 offen", f"buffer_store_dword v17, v33, {WS}, s63 offen"])
        self.stamp("o_pub")
        A(f"s_cmp_eq_u32 s{sW}, 0\ns_cbranch_scc0 L_np0\ns_setprio 3\nL_np0:")
        A(f"s_cmp_lt_u32 s{sR}, 20\ns_cbranch_scc0 L_gu")
        A(f"v_lshrrev_b32 v57, 4, v0\nv_and_b32 v58, 15, v0\nv_and_b32 v59, 3, v0\nv_bfe_u32 v60, v0, 2, 2")
        A(f"v_lshl_add_u32 v56, v57, 3, v60\nv_lshlrev_b32 v56, 6, v56\nv_lshl_add_u32 v56, v59, 3, v56")
        A(f"s_mul_i32 s62, s{sW}, 6144\ns_add_u32 s62, s62, {L_W2}\nv_add_u32 v56, s62, v56")
        A(f"v_cmp_gt_u32 vcc, 8, v58\nv_mov_b32 v61, s{sHUGE}\nv_lshlrev_b32 v59, 7, v57\nv_lshl_add_u32 v59, v58, 4, v59\nv_cndmask_b32 v59, v61, v59, vcc")
        A("v_lshlrev_b32 v60, 2, v58\nv_xor_b32 v62, 16, v60\nv_cndmask_b32 v60, v61, v60, vcc\nv_cndmask_b32 v61, v61, v62, vcc")
        A(f"v_lshlrev_b32 v58, 6, v58\nv_lshl_add_u32 v58, v57, 4, v58\ns_lshl_b32 s62, s{sW}, 9\ns_add_u32 s62, s62, {L_PO}\nv_add_u32 v58, s62, v58")
        A(f"s_mul_i32 s62, s{sW}, 1536\ns_add_u32 s62, s62, s{sLOC}\ns_add_u32 s62, s62, {LOC_O5}")
        A(f"s_lshl_b32 s63, s{sKQ}, 5\ns_add_u32 s63, s63, s{sLOC}\ns_add_u32 s63, s63, {LOC_LSE}")
        A("s_waitcnt vmcnt(0)\ns_barrier")
        self.stamp("wo_ok")
        self.tr_reads(8, 56, 3, 64); self.tr_reads(20, 56, 3, 64, extra=32)
        h = self.poll_begin()
        for i in range(3): A(f"buffer_load_dwordx4 v[{32+4*i}:{35+4*i}], v59, {WS}, s62 offen offset:{i*512} sc1")
        A(f"buffer_load_dword v44, v60, {WS}, s63 offen sc1\nbuffer_load_dword v45, v61, {WS}, s63 offen sc1")
        A("s_waitcnt vmcnt(0) lgkmcnt(0)")
        m = []
        for i in range(3):
            for t in range(2):
                m.append(f"v_mfma_f32_16x16x32_bf16 v[{48+4*t}:{51+4*t}], v[{8+12*t+4*i}:{11+12*t+4*i}], v[{32+4*i}:{35+4*i}], {'0' if i == 0 else f'v[{48+4*t}:{51+4*t}]'}")
        chk = self.sentinel_check(list(range(32, 46)), 47)
        self.interleave(m, ["v_sub_f32 v46, v45, v44", "v_exp_f32 v46, v46"] + chk[:3] + ["v_add_f32 v46, 1.0, v46", "v_rcp_f32 v46, v46"] + chk[3:])
        self.poll_end(h)
        for r in range(48, 56): A(f"v_mul_f32 v{r}, v{r}, v46")
        for r in range(48, 56): A(f"v_add_f32_dpp v{r}, v{r}, v{r} row_shl:4 row_mask:0xf bank_mask:0x1")
        self.exec(M_C4); A("ds_write_b128 v58, v[48:51]\nds_write_b128 v58, v[52:55] offset:256"); self.exec(-1)
        A(f"s_cmp_eq_u32 s{sW}, 0\ns_cbranch_scc0 L_own_rest")
        A("v_lshrrev_b32 v24, 4, v0\nv_bfe_u32 v25, v0, 3, 1\nv_bfe_u32 v26, v0, 2, 1\nv_and_b32 v27, 3, v0")
        A(f"v_lshlrev_b32 v24, 6, v24\nv_lshl_add_u32 v24, v25, 11, v24\nv_lshl_add_u32 v24, v26, 8, v24\nv_lshl_add_u32 v24, v27, 4, v24\nv_add_u32 v24, {L_PO}, v24")
        self.owner_addrs()
        A(f"v_cmp_eq_u32 vcc, 0, v53\nv_cndmask_b32 v25, v55, v58, vcc")
        A(f"s_lshl_b32 s62, s{sX}, 9\ns_add_u32 s62, s62, s{sG1}")
        A(f"s_lshl_b32 s63, s{sR}, 8\ns_add_u32 s63, s63, s{sLOC}\ns_add_u32 s63, s63, {LOC_X1}")
        A(f"s_lshl_b32 s64, s{sR}, 6\ns_add_u32 s64, s64, s{sLOC}\ns_add_u32 s64, s64, {LOC_ST1}")
        A("s_waitcnt lgkmcnt(0)\ns_barrier")
        for k in range(4): A(f"ds_read_b128 v[{8+4*k}:{11+4*k}], v24 offset:{k*512}")
        A("s_waitcnt lgkmcnt(2)\nv_pk_add_f32 v[8:9], v[8:9], v[12:13]\nv_pk_add_f32 v[10:11], v[10:11], v[14:15]")
        A("s_waitcnt lgkmcnt(0)\nv_pk_add_f32 v[16:17], v[16:17], v[20:21]\nv_pk_add_f32 v[18:19], v[18:19], v[22:23]")
        A("v_pk_add_f32 v[8:9], v[8:9], v[16:17]\nv_pk_add_f32 v[10:11], v[10:11], v[18:19]")
        for r in range(8, 12): A(f"v_add_f32_dpp v{r}, v{r}, v{r} row_ror:8 row_mask:0xf bank_mask:0xf")
        A(f"buffer_store_dwordx4 v[8:11], v25, {WS}, s62 offen sc1")
        self.stamp("r1_pub")
        A(f"v_lshlrev_b32 v12, 16, v{vXP}\nv_and_b32 v13, 0xffff0000, v{vXP}")
        self.gather8(sG1)
        A(f"v_add_f32 v28, v28, v12\nv_add_f32 v29, v29, v13\nv_cvt_pk_bf16_f32 v{vXP}, v28, v29")
        self.publish_x(63, 64)
        self.stamp("x1_pub")
        A(f"v_mov_b32 v62, s{sHUGE}"); self.stats_addr(60)
        A(f"s_add_u32 s64, s{sLOC}, {LOC_ST1}")
        h = self.poll_begin()
        A(f"buffer_load_dwordx4 v[28:31], v60, {WS}, s64 offen sc1\nbuffer_load_dwordx4 v[32:35], v61, {WS}, s64 offen sc1\ns_waitcnt vmcnt(0)")
        for x in self.sentinel_check(list(range(28, 36)), 36): A(x)
        self.poll_end(h)
        A("v_pk_add_f32 v[28:29], v[28:29], v[32:33]\nv_pk_add_f32 v[30:31], v[30:31], v[34:35]")
        for x in self.row_allreduce([28, 29, 30, 31]) + self.stats_finish(28, 29, 32): A(x)
        A(f"v_fma_f32 v30, -v{vMU}, v31, v30\nv_mul_f32 v30, v30, v{vRS}\nv_mul_f32 v30, {hex(f2u(-math.log2(math.e)))}, v30")
        A(f"v_exp_f32 v30, v30\nv_add_f32 v30, 1.0, v30\nv_rcp_f32 v{vSG}, v30")
        A(f"v_lshlrev_b32 v60, 16, v{vXP}\nv_and_b32 v61, 0xffff0000, v{vXP}\nv_sub_f32 v30, v60, v{vMU}\nv_sub_f32 v31, v61, v{vMU}")
        A(f"v_fma_f32 v60, v30, v{vRS}, v60\nv_fma_f32 v61, v31, v{vRS}, v61")
        A(f"s_add_u32 s65, s{sG1}, {G3}")
        A(f"s_cmp_eq_u32 s{sL}, 0\ns_cbranch_scc0 L_last")
        A(f"v_add_u32 v55, {L_WQ}, v{vTR}")
        self.tr_reads(8, 55, 5, 32)
        A(f"s_lshl_b32 s63, s{sR}, 8\ns_add_u32 s63, s63, s{sLOC}\ns_add_u32 s63, s63, {LOC_X2}")
        A(f"s_lshl_b32 s64, s{sR}, 6\ns_add_u32 s64, s64, s{sLOC}\ns_add_u32 s64, s64, {LOC_ST2}")
        A("s_barrier")
        self.gather8(65)
        A(f"v_fma_f32 v28, v28, v{vSG}, v60\nv_fma_f32 v29, v29, v{vSG}, v61\nv_cvt_pk_bf16_f32 v{vXP}, v28, v29")
        self.publish_x(63, 64)
        self.stamp("x2_pub")
        A("s_branch L_q2")
        A("L_last:")
        A(f"s_and_b32 s62, s{sR}, 7\ns_cmp_eq_u32 s62, s{sX}\ns_cbranch_scc0 L_fin")
        self.srd(SX, pOUT, 5120)
        A(f"s_lshl_b32 s62, s{sR}, 6")
        self.gather8(65)
        A(f"v_fma_f32 v28, v28, v{vSG}, v60\nv_fma_f32 v29, v29, v{vSG}, v61\nv_cvt_pk_bf16_f32 v28, v28, v29")
        A(f"buffer_store_dword v28, v59, {SX}, s62 offen")
        A("s_branch L_fin")
        A("L_own_rest:")
        A(f"s_cmp_eq_u32 s{sKQ}, 1\ns_cbranch_scc1 L_down")
        A("s_waitcnt lgkmcnt(0)\ns_barrier")
        A(f"s_cmp_eq_u32 s{sL}, 0\ns_cbranch_scc0 L_fin\ns_branch L_q2pre")
        A("L_down:\ns_setprio 2")
        A(f"s_mul_i32 s68, s{sT}, 6144\ns_add_u32 s68, s68, {L_W2 + 49152}\nv_add_u32 v60, s68, v{vTR}")
        A(f"s_cmp_eq_u32 s{sL}, 0\ns_cbranch_scc0 L_down1")
        self.srd(SA, pD, 1966080)
        A("v_lshrrev_b32 v61, 1, v0\nv_mul_u32_u24 v61, 1280, v61\nv_and_b32 v62, 1, v0\nv_lshl_add_u32 v61, v62, 4, v61")
        A(f"s_mul_i32 s67, s{sX}, {192*1280}\ns_lshl_b32 s66, s{sR}, 6\ns_add_u32 s67, s67, s66\ns_lshl_b32 s66, s{sT}, 5\ns_add_u32 s67, s67, s66")
        self.dma(SA, 61, 67, 32*1280, 68, 6)
        A("L_down1:")
        A("s_waitcnt lgkmcnt(0)\ns_barrier\ns_waitcnt vmcnt(0)")
        self.tr_reads(8, 60, 6, 32)
        A(f"v_and_b32 v61, 15, v0\nv_cmp_gt_u32 vcc, 4, v61\nv_lshlrev_b32 v61, 7, v61\nv_lshrrev_b32 v62, 4, v0\nv_lshl_add_u32 v61, v62, 4, v61")
        A(f"v_mov_b32 v62, s{sHUGE}\nv_cndmask_b32 v61, v62, v61, vcc")
        A(f"s_add_u32 s62, s{sLOC}, {LOC_H}\ns_lshl_b32 s63, s{sX}, 9\ns_add_u32 s63, s63, s{sG1}\ns_lshl_b32 s64, s{sT}, 6\ns_add_u32 s63, s63, s64\ns_add_u32 s63, s63, {G3}")
        h = self.poll_begin(sleep=1)
        for i in range(6): A(f"buffer_load_dwordx4 v[{32+4*i}:{35+4*i}], v{vACT}, {WS}, s62 offen offset:{i*256} sc1")
        A("s_waitcnt vmcnt(0) lgkmcnt(0)")
        m = [f"v_mfma_f32_16x16x32_bf16 v[56:59], v[{8+4*i}:{11+4*i}], v[{32+4*i}:{35+4*i}], {'0' if i == 0 else 'v[56:59]'}" for i in range(6)]
        self.interleave(m, self.sentinel_check(list(range(32, 56)), 62))
        self.poll_end(h)
        A(f"buffer_store_dwordx4 v[56:59], v61, {WS}, s63 offen sc1")
        A(f"s_cmp_eq_u32 s{sL}, 0\ns_cbranch_scc0 L_fin")
        A("L_q2pre:")
        A(f"s_mul_i32 s68, s{sW}, 5120\ns_add_u32 s68, s68, {L_WQ}\nv_add_u32 v55, s68, v{vTR}")
        self.tr_reads(8, 55, 5, 32)
        A("s_barrier\ns_branch L_q2")
        A("L_gu:")
        A(f"s_mul_i32 s68, s{sW}, 5120\ns_add_u32 s68, s68, {L_W2}\nv_add_u32 v54, s68, v{vTR}")
        self.part_addr()
        A(f"s_mul_i32 s66, s{sKQ}, 1280\ns_add_u32 s66, s66, s{sLOC}\ns_add_u32 s66, s66, {LOC_X1}\ns_add_u32 s67, s{sLOC}, {LOC_ST1}")
        A("s_waitcnt vmcnt(0)\ns_barrier")
        self.stamp("wo_ok")
        self.tr_reads(8, 54, 5, 32)
        A(f"v_mov_b32 v63, v52")
        self.final_addrs()
        A(f"v_lshrrev_b32 v56, 1, v54\nv_lshlrev_b32 v56, 6, v56\nv_lshl_add_u32 v56, v52, 4, v56\nv_and_b32 v57, 1, v54\nv_lshl_add_u32 v56, v57, 3, v56\nv_lshl_add_u32 v56, v53, 1, v56")
        A(f"v_and_b32 v57, 1, v53\nv_cmp_eq_u32 vcc, 0, v57\nv_mov_b32 v61, s{sHUGE}\nv_cndmask_b32 v56, v61, v56, vcc")
        self.stats_addr(59)
        A(f"v_mov_b32 v52, v63\ns_sub_u32 s65, s{sR}, 20\ns_lshl_b32 s65, s65, 7\ns_add_u32 s65, s65, s{sLOC}\ns_add_u32 s65, s65, {LOC_H}")
        A(f"s_cmp_eq_u32 s{sL}, 0\ns_cbranch_scc0 L_gu1")
        for r in range(28, 32): A(f"v_mov_b32 v{r}, 0x3f803f80")
        A("s_waitcnt lgkmcnt(0)")
        for i in range(5): A(f"v_mfma_f32_16x16x32_bf16 v[48:51], v[{8+4*i}:{11+4*i}], v[28:31], {'0' if i == 0 else 'v[48:51]'}")
        self.part_write(off=2048)
        A("s_waitcnt lgkmcnt(0)\ns_barrier")
        A("ds_read_b128 v[28:31], v55 offset:2048\nds_read_b128 v[32:35], v55 offset:2304\ns_waitcnt lgkmcnt(0)")
        self.red4([28, 32])
        A(f"v_mov_b32 v{vCSG}, v28\nv_mov_b32 v{vCSU}, v32")
        A("L_gu1:")
        self.gemv5(66, sleep=1)
        self.part_write()
        A(f"s_cmp_eq_u32 s{sW}, 0\ns_cbranch_scc0 L_gu_rest")
        self.light_stats_loads(67)
        A("s_waitcnt lgkmcnt(0)\ns_barrier")
        self.final_with_stats(67)
        A(f"v_fma_f32 v8, -v{vMU}, v{vCSG}, v8\nv_fma_f32 v12, -v{vMU}, v{vCSU}, v12\nv_mul_f32 v8, v8, v{vRS}\nv_mul_f32 v12, v12, v{vRS}")
        A(f"v_mul_f32 v9, {hex(f2u(-math.log2(math.e)))}, v8\nv_exp_f32 v9, v9\nv_mul_f32 v8, v8, v12\nv_add_f32 v9, 1.0, v9\nv_rcp_f32 v9, v9\nv_mul_f32 v8, v8, v9")
        A("v_mov_b32_dpp v9, v8 row_shl:4 row_mask:0xf bank_mask:0x5\nv_cvt_pk_bf16_f32 v8, v8, v9")
        self.mode_store([f"buffer_store_dword v8, v56, {WS}, s65 offen"])
        self.stamp("x1_pub")
        A("s_branch L_gu_done\nL_gu_rest:\ns_waitcnt lgkmcnt(0)\ns_barrier\nL_gu_done:")
        A(f"s_cmp_eq_u32 s{sL}, 0\ns_cbranch_scc0 L_fin")
        A(f"s_mul_i32 s68, s{sW}, 5120\ns_add_u32 s68, s68, {L_WQ}\nv_add_u32 v55, s68, v{vTR}")
        self.tr_reads(8, 55, 5, 32)
        A("L_q2:")
        if self.stamps:
            A("s_waitcnt lgkmcnt(0)")
            for k in range(13): A(f"s_mov_b32 s{32+k}, s{76+2*k}")
        A(f"s_mul_i32 s66, s{sKQ}, 1280\ns_add_u32 s66, s66, s{sLOC}\ns_add_u32 s66, s66, {LOC_X2}\ns_add_u32 s67, s{sLOC}, {LOC_ST2}")
        A(f"s_mov_b32 s{sL}, 1\ns_add_u32 s{sLOC}, s{sLOC}, {LSTR}\ns_add_u32 s{sG1}, s{sG1}, {G_L}")
        A(f"s_cmp_eq_u32 s{sW}, 0\ns_cbranch_scc0 L_q2a")
        self.final_addrs(); self.q_store_addrs()
        A(f"v_mov_b32 v61, s{sHUGE}"); self.stats_addr(59)
        A(f"v_lshlrev_b32 v52, 2, v0\nds_read_b32 v{vCQ0}, v52 offset:{L_CS}\nds_read_b32 v{vCQ1}, v52 offset:{L_CS+256}")
        A("L_q2a:")
        self.part_addr()
        self.gemv5(66)
        self.part_write()
        A(f"s_cmp_eq_u32 s{sW}, 0\ns_cbranch_scc0 L_q2_rest")
        self.light_stats_loads(67)
        A("s_waitcnt lgkmcnt(0)\ns_barrier")
        self.final_with_stats(67)
        self.q_final_tail()
        self.stamp("q2_pub")
        A("s_branch L_q2_done\nL_q2_rest:\ns_waitcnt lgkmcnt(0)\ns_barrier\nL_q2_done:")
        self.bq_addrs()
        A(f"s_mul_i32 s70, s{sHH}, 1536\ns_mul_i32 s71, s{sB}, 384\ns_add_u32 s70, s70, s71\ns_add_u32 s70, s70, s{sLOC}")
        h = self.poll_begin()
        for k in range(3): A(f"buffer_load_dwordx4 v[{8+4*k}:{11+4*k}], v{20+k}, {WS}, s70 offen sc1")
        A("s_waitcnt vmcnt(0)")
        for x in self.sentinel_check(list(range(8, 20)), 23): A(x)
        self.poll_end(h)
        A("s_branch L_att")
        A("L_fin:")
        if self.stamps:
            self.stnames.append("end"); k = len(self.stnames) - 1
            A(f"s_waitcnt vmcnt(0)\ns_memrealtime s[{76+2*k}:{77+2*k}]\ns_waitcnt lgkmcnt(0)")
            A(f"s_lshl_b32 s62, s2, 3\ns_add_u32 s62, s62, s{sW}\ns_lshl_b32 s62, s62, 7\ns_add_u32 s62, s62, {STAMPS}")
            A(f"s_add_u32 s62, s{pWS}, s62\ns_addc_u32 s63, s{pWS+1}, 0\nv_mov_b32 v8, 0\ns_mov_b64 exec, 1")
            for i in range(k + 1): A(f"v_mov_b32 v9, s{76+2*i}\nglobal_store_dword v8, v9, s[62:63] offset:{4*i}")
            A(f"v_mov_b32 v9, s{sMODE}\nglobal_store_dword v8, v9, s[62:63] offset:60")
            for i in range(13): A(f"v_mov_b32 v9, s{32+i}\nglobal_store_dword v8, v9, s[62:63] offset:{64+4*i}")
        if self.stamps and self.dbgout:
            A(f"s_add_u32 s62, s2, s{sW}\ns_cmp_eq_u32 s62, 0\ns_cbranch_scc0 {L_END}")
            sel = [32 + self.stnames.index(n) for n in ("c_qpart", "c_flags", "c_q", "att_end", "o_pub", "wo_ok", "r1_pub", "x1_pub", "x2_pub")]
            sel += [76 + 2 * self.stnames.index(n) for n in ("att_end", "r1_pub", "end")]
            for i, r in enumerate(sel): A(f"s_sub_u32 s62, s{r}, s76\nv_mov_b32 v9, s62\nglobal_store_dword v8, v9, s[{pDBG}:{pDBG+1}] offset:{16+4*i}")
        A(f"{L_END}:\ns_endpgm")
        for x in self.far: A(x)
        A("L_codeend:")
        body = A.finish(verbose=False)
        return wrap(body, 256, 512, LDS_BYTES, 256, 64)

if __name__ == "__main__":
    import json
    out = sys.argv[1] if len(sys.argv) > 1 else "k.s"
    g = Gen(stamps="stamps" in sys.argv, force_slow="slow" in sys.argv, dbgout="dbg" in sys.argv, kvfl="" if "kvplain" in sys.argv else " nt")
    s = g.build()
    open(out, "w").write(s)
    json.dump(g.stnames, open(out[:-2] + ".json", "w"))
    build(out)
    print(out, len(s.splitlines()), "lines")
```
